```python
import torch

def _softmax(x, axis=-1):
    return torch.softmax(x, dim=axis)
def _gelu(x):
    return torch.nn.functional.gelu(x, approximate="tanh")
def _silu(x):
    return torch.nn.functional.silu(x)
def _sigmoid(x):
    return torch.sigmoid(x)
def _layernorm(x, axis=-1, eps=1e-5):
    m = x.mean(dim=axis, keepdim=True)
    v = x.var(dim=axis, keepdim=True, unbiased=False)
    return (x - m) / torch.sqrt(v + eps)
def _scatter_add(tgt, idx, src, axis=0):
    return tgt.clone().index_add_(axis, idx, src)
def _segment_sum(src, seg, n):
    out = torch.zeros((n,) + src.shape[1:], dtype=src.dtype)
    return out.index_add_(0, seg, src)
def _pad(x, pw):
    flat = tuple(v for pair in reversed(pw) for v in pair)
    return torch.nn.functional.pad(x, flat)

kernel_name = 'sequential_preLN__mha_block_cached__swiglu_ffn__decode'

def setup_inputs():

    _w = (lambda a: (lambda t: t.to(torch.bfloat16) if t.is_floating_point() else t)(torch.as_tensor(a)))
    def _A_setup():
        B, Sq, D = 1, 1, 512
        H, Sk, Dh = 32, 16384, 128
        return {
            "x": _w((lambda *s: torch.randn(*s, dtype=torch.bfloat16) * 0.05)(B, Sq, D)),
            "k_cache": _w((lambda *s: torch.randn(*s, dtype=torch.bfloat16) * 3.2)(B, H, Sk, Dh)),
            "v_cache": _w((lambda *s: torch.randn(*s, dtype=torch.bfloat16) * 0.4)(B, H, Sk, Dh)),
            "wq": _w((lambda *s: torch.randn(*s, dtype=torch.bfloat16) * 3.2)(D, H * Dh) * (D ** -0.5)),
            "wo": _w((lambda *s: torch.randn(*s, dtype=torch.bfloat16) * 0.4)(H * Dh, D) * ((H * Dh) ** -0.5)),
        }
    _A_in = _A_setup()

    def _B_setup():
        B, S, D, F = 1, 1, 512, 1792
        return {
            "x": _w((lambda *s: torch.randn(*s, dtype=torch.bfloat16) * 0.05)(B, S, D)),
            "w_gate": _w((lambda *s: torch.randn(*s, dtype=torch.bfloat16) * 0.05)(D, F)),
            "w_up": _w((lambda *s: torch.randn(*s, dtype=torch.bfloat16) * 0.05)(D, F)),
            "w_down": _w((lambda *s: torch.randn(*s, dtype=torch.bfloat16) * 0.05)(F, D)),
        }
    _B_in = _B_setup()

    return {
        "A_x": _A_in["x"],
        "A_k_cache": _A_in["k_cache"],
        "A_v_cache": _A_in["v_cache"],
        "A_wq": _A_in["wq"],
        "A_wo": _A_in["wo"],
        "B_x": _B_in["x"],
        "B_w_gate": _B_in["w_gate"],
        "B_w_up": _B_in["w_up"],
        "B_w_down": _B_in["w_down"],
    }

def reference(A_x, A_k_cache, A_v_cache, A_wq, A_wo, B_x, B_w_gate, B_w_up, B_w_down):
    def _A_ref(x, k_cache, v_cache, wq, wo):
        B, Sq, D = x.shape
        H, Dh = 32, 128
        q = (lambda x, *d: x.permute(*d))((x @ wq).reshape(B, Sq, H, Dh), 0, 2, 1, 3)
        scores = torch.einsum("bhqd,bhkd->bhqk", q, k_cache) * (Dh ** -0.5)
        p = _softmax(scores, axis=-1)
        o = torch.einsum("bhqk,bhkd->bhqd", p, v_cache)
        return (lambda x, *d: x.permute(*d))(o, 0, 2, 1, 3).reshape(B, Sq, H * Dh) @ wo

    def _B_ref(x, w_gate, w_up, w_down):
        g = _silu(x @ w_gate)
        u = x @ w_up
        return (g * u) @ w_down

    x = A_x
    h = x + _A_ref(_layernorm(x, axis=-1), A_k_cache, A_v_cache, A_wq, A_wo)
    h2 = h + _B_ref(_layernorm(h, axis=-1), B_w_gate, B_w_up, B_w_down)
    return h2
```

```python
import re

TRANS = ("v_exp_f32", "v_log_f32", "v_rcp_f32", "v_rsq_f32", "v_sqrt_f32", "v_sin_f32", "v_cos_f32")

def regs_of(op):
    op = op.strip()
    op = op.lstrip("-")
    m = re.fullmatch(r"abs\((.*)\)|\|(.*)\|", op)
    if m: op = m.group(1) or m.group(2)
    m = re.fullmatch(r"([vsa])(\d+)", op)
    if m: return {(m.group(1), int(m.group(2)))}
    m = re.fullmatch(r"([vsa])\[(\d+):(\d+)\]", op)
    if m: return {(m.group(1), i) for i in range(int(m.group(2)), int(m.group(3)) + 1)}
    if op in ("vcc", "vcc_lo", "vcc_hi"): return {("vcc", 0)}
    if op in ("exec", "exec_lo", "exec_hi"): return {("exec", 0)}
    if op == "m0": return {("m0", 0)}
    return set()

def split_ops(s):
    out, depth, cur = [], 0, ""
    for ch in s:
        if ch in "[(": depth += 1
        if ch in "])": depth -= 1
        if ch == "," and depth == 0:
            out.append(cur.strip()); cur = ""
        else: cur += ch
    if cur.strip(): out.append(cur.strip())
    return out

class Ins:
    def __init__(self, text):
        self.text = text
        t = text.split(";")[0].strip()
        parts = t.split(None, 1)
        self.op = parts[0]
        ops = split_ops(parts[1]) if len(parts) > 1 else []
        self.mods = ""
        if ops:
            last = ops[-1]
            m = re.match(r"^(\S+)\s+(.*)$", last)
            if m: ops[-1] = m.group(1); self.mods = m.group(2)
        self.ops = ops
        op = self.op
        self.is_valu = op.startswith("v_")
        self.is_mfma = op.startswith("v_mfma")
        self.is_dot = op.startswith("v_dot")
        self.is_trans = any(op.startswith(x) for x in TRANS)
        self.is_dpp = op.endswith("_dpp")
        self.is_perml = op.startswith("v_permlane")
        self.is_rdlane = op.startswith("v_readlane") or op.startswith("v_readfirstlane")
        self.is_wrlane = op.startswith("v_writelane")
        self.is_vmem = op.startswith(("buffer_", "global_", "flat_"))
        self.is_ds = op.startswith("ds_")
        self.is_salu = op.startswith("s_")
        W, R = set(), set()
        ro = [regs_of(o) for o in ops]
        if self.is_valu:
            if self.is_perml:
                W = ro[0] | ro[1]; R = ro[0] | ro[1]
            else:
                nd = 1
                if op.startswith(("v_add_co", "v_sub_co", "v_addc_co", "v_subb_co", "v_subrev_co", "v_mad_u64", "v_div_scale")): nd = 2
                for x in ro[:nd]: W |= x
                for x in ro[nd:]: R |= x
                if op.startswith(("v_fmac", "v_dot2c", "v_writelane")) or self.is_dpp: R |= ro[0]
                if op.startswith("v_cndmask") and len(ops) == 3: R |= {("vcc", 0)}
            self.dpp_src = ro[1] if self.is_dpp else set()
        elif self.is_vmem:
            is_store = "store" in op
            is_atomic = "atomic" in op
            if is_store or (is_atomic and "sc0" not in self.mods) or " lds" in (" " + self.mods):
                for x in ro: R |= x
            elif is_atomic and op.startswith("buffer_"):
                W = ro[0]
                for x in ro: R |= x
            else:
                W = ro[0]
                for x in ro[1:]: R |= x
                if "d16" in op: R |= ro[0]
            self.wide_store = is_store and ("x3" in op or "x4" in op)
            if self.wide_store:
                self.store_data = ro[0] if op.startswith("buffer_") else ro[1]
        elif self.is_ds:
            if op.startswith(("ds_read", "ds_bpermute", "ds_permute", "ds_swizzle")) or "_rtn" in op:
                W = ro[0]
                for x in ro[1:]: R |= x
            else:
                for x in ro: R |= x
        elif self.is_salu:
            if op.startswith(("s_cmp", "s_cbranch", "s_branch", "s_waitcnt", "s_nop", "s_barrier", "s_endpgm", "s_sleep", "s_setprio", "s_bitcmp", "s_setpc")):
                for x in ro: R |= x
            else:
                if ro: W = ro[0]
                for x in ro[1:]: R |= x
                if "saveexec" in op: W |= {("exec", 0)}
        self.W, self.R = W, R
        if self.is_mfma:
            self.passes = 8 if "32x32" in op else 4
            self.srcAB = ro[1] | ro[2]; self.srcC = ro[3]
    def states(self):
        if self.op == "s_nop": return int(self.ops[0], 0) + 1
        return 1

def need(p, c):
    n = 0
    vW = {r for r in p.W if r[0] in "va" and r[0] != "vcc"}
    sW = {r for r in p.W if r[0] in ("s", "vcc")}
    if p.is_mfma:
        big = {4: 8, 8: 12}[p.passes]
        if c.is_mfma:
            if vW & c.srcAB: n = max(n, big)
            if vW & c.srcC:
                if c.srcC == vW and c.passes == p.passes: pass
                else: n = max(n, big - 2)
            if vW & c.W and not (c.W == vW and c.srcC == vW): n = max(n, big)
        elif c.is_valu or c.is_vmem or c.is_ds:
            if vW & (c.R | c.W): n = max(n, big)
        if c.is_valu and not c.is_mfma and (p.srcC & c.W): n = max(n, {4: 3, 8: 7}[p.passes])
    elif p.is_valu:
        if p.is_dot:
            if c.is_valu and (vW & (c.R | c.W)):
                same = c.op == p.op
                if same:
                    ro = [regs_of(o) for o in c.ops]
                    ab = ro[1] | ro[2]
                    if vW & ab: n = max(n, 3)
                else: n = max(n, 3)
            if (c.is_vmem or c.is_ds) and (vW & c.R): n = max(n, 3)
        if c.is_mfma and (vW & c.R): n = max(n, 2)
        if c.is_valu and c.is_dpp and (vW & c.dpp_src): n = max(n, 2)
        if c.is_valu and c.is_perml and (vW & c.R): n = max(n, 2)
        if c.is_valu and c.is_rdlane and (vW & c.R): n = max(n, 1)
        if p.is_trans and (c.is_valu or c.is_vmem or c.is_ds) and (vW & c.R): n = max(n, 1)
        if "sdwa" in p.op or "op_sel" in p.mods:
            if c.is_valu and (vW & (c.R | c.W)): n = max(n, 1)
        if sW:
            if c.is_valu and (sW & c.R):
                n = max(n, 4 if (c.is_rdlane or c.is_wrlane) else 2)
            if c.is_vmem and (sW & c.R): n = max(n, 5)
            if c.is_salu and (sW & c.R): n = max(n, 1)
        if ("exec", 0) in p.W: n = max(n, 5)
    elif p.is_vmem:
        if getattr(p, "wide_store", False) and (p.store_data & c.W): n = max(n, 2)
    elif p.is_salu:
        if ("m0", 0) in p.W and (c.is_vmem or c.is_ds): n = max(n, 1)
    return n

class Asm:
    def __init__(self):
        self.lines = []
        self.hist = []
        self.vm = []
        self.nins = 0
        self.nnop = 0
    def raw(self, t): self.lines.append(t)
    def c(self, t): self.lines.append("    ; " + t)
    def _emit(self, ins):
        self.lines.append("    " + ins.text); self.hist.append(ins); self.nins += 1
        if len(self.hist) > 24: self.hist.pop(0)
    hook = None
    hcount = 0
    hdone = 0
    def __call__(self, text, tag=None):
        if self.hook:
            self.hcount += 1
            fn, every, first = self.hook
            if self.hcount >= (every if self.hdone else first):
                h = self.hook; self.hook = None; self.hcount = 0; self.hdone += 1
                fn(); self.hook = h
        ins = Ins(text)
        req = 0; dist = 0
        for p in reversed(self.hist):
            r = need(p, ins) - dist
            if r > req: req = r
            dist += p.states()
            if dist > 20: break
        if req > 0:
            self._emit(Ins(f"s_nop {req-1}")); self.nnop += 1
        if ins.op.startswith(("s_cbranch", "s_branch", "s_setpc")): self.flush(keep_for=ins)
        self._emit(ins)
        if ins.is_vmem: self.vm.append(tag)
        return ins
    def flush(self, keep_for=None):
        req = 0; dist = 1 if keep_for is not None else 0
        for p in reversed(self.hist):
            w = 0
            if p.is_mfma: w = {4: 8, 8: 12}[p.passes]
            elif p.is_valu:
                w = 3 if p.is_dot else 2
                if p.op.startswith("v_cmp") and p.W == {("vcc", 0)} and keep_for is not None and "vcc" in keep_for.op: w = 1
                if any(r[0] == "s" for r in p.W): w = 5
                if ("exec", 0) in p.W: w = 5
            elif getattr(p, "wide_store", False): w = 2
            elif ("m0", 0) in p.W: w = 1
            if self.noflush_mfma and p.is_mfma: w = 0
            r = w - dist
            if r > req: req = r
            dist += p.states()
            if dist > 20: break
        if req > 0:
            self._emit(Ins(f"s_nop {req-1}")); self.nnop += 1
    noflush_mfma = False
    def label(self, name):
        self.flush()
        self.lines.append(name + ":")
    def wait(self, *tags, lgkm=None):
        idx = -1
        for t in tags:
            found = [i for i, x in enumerate(self.vm) if x == t]
            if found: idx = max(idx, found[-1])
        s = []
        if idx >= 0:
            n = len(self.vm) - 1 - idx
            assert n <= 63
            s.append(f"vmcnt({n})")
            self.vm = self.vm[idx + 1:]
        if lgkm is not None: s.append(f"lgkmcnt({lgkm})")
        if s: self("s_waitcnt " + " ".join(s))
    def waitall(self, lgkm=None):
        self.vm = []
        self("s_waitcnt vmcnt(0)" + (f" lgkmcnt({lgkm})" if lgkm is not None else ""))
    def text(self): return "\n".join(self.lines) + "\n"
```

```python
import sys, math
sys.path.insert(0, "gen")
from asmlib import Asm
NAME = "sequential_preLN__mha_block_cached__swiglu_ffn__decode_kernel"
HDR = open("sequential_preLN__mha_block_cached__swiglu_ffn__decode.s.ref").read().split("; Override launch")[0]

DOC = '''; ---------------------------------------------------------------------------------------------------------
; Hand-offs are 8-byte {data, tag} granules in d_ws; tag = f(generation word found in d_ws), advanced each launch.
; ---------------------------------------------------------------------------------------------------------'''
LOG2E = "0x3fb8aa3b"
SCALE = "0x3db504f3"
FULL = "row_mask:0xf bank_mask:0xf"
ID = "quad_perm:[0,1,2,3]"
G_OFF = 0
QP = 0x10000
OP = 0x50000
OHS = 4096 + 128
YP = 0x78000
ZP = 0x80000
XP = 0x88000
SP = 0x90000
CP = 0x98000
PP = 0xa0000
PRS = 4096 + 128
YC = 0x120000
STAMP = 0x10000000
L_Q = 0
L_O = 256; OS = 528
L_ML = L_O + 4 * OS
L_MODE = L_ML + 32
L_Y = L_MODE + 16; YS = 80
L_H = L_Y + 32 * YS
L_ONE = L_H + 64
L_MX = L_ONE + 16
L_S = ((L_MX + 32 + 1023) // 1024) * 1024
PS = 1056
L_W = L_S + 16384
L_DN = L_W + 34 * 1024
L_END = max(L_DN + 2 * 7168, 84 * 1024)
L_ZERO = L_DN
SPIN = 200000
SENT = 0x7fc12345

def gen(fn, NPRE=5, PD=5, DI=5, REFILL=2, stamps=False, diag_fix=0, forceslow=False, nt="nt", wnt="nt", fnt="nt", ont="",
        tau=107.0, tau2=108.0, THR=40, THL=20, WW=(4, 5, 6, 7), PER=4, BIAS=0, CU=200, WD=2, PRB=12, zatom=True, zlast=True, bar2=2, rowwise=True, zwait=True, BOFF=20, yatom=True, ytouch=True, ywait=False, warm=2, WDW=16, wmnt="", WD2=3, smooth=5, wpre=True, THV=None, NPY=1, SGY=2, NPZ=3, SGZ=3, ycopy=False, ycoal=True, cwarm=True, ofl="", gearly=True, otouch=0, wgmax=True, opack=False, staged=True, ldsA=True, ZD0=4, YE=0, tfirst=False, yflag=0, yadj=False, DND=0, MPY=0, PD0=None, TK=(50,45), BK=-10, trace=False, nobar=True, zrd=True, vt=0, vlate=0, cw0=True, inter=0, ifirst=60):
    if PD0 is None: PD0 = PD
    LD = 2
    D = math.ceil(WW[-1])
    DITH = [0.0, 0.5, 0.25, 0.75, 0.125, 0.625, 0.375, 0.875]
    wv = lambda W, k: int(math.floor(W + DITH[k] + 1e-9))
    a = Asm()
    def stamp(i):
        if stamps: a(f"s_memrealtime s[{64+2*i}:{65+2*i}]")
    a.raw(HDR.rstrip())
    a.raw(f"; @launch grid=(256,1,1) block=(320,1,1) lds={L_END}")
    a.raw(DOC)
    a.raw('.amdgcn_target "amdgcn-amd-amdhsa--gfx950"')
    a.raw(".text"); a.raw(f".globl {NAME}"); a.raw(".p2align 8"); a.raw(f".type {NAME},@function"); a.raw(f"{NAME}:")
    a("s_cmp_ge_u32 s2, 256"); a("s_cbranch_scc1 L_done")
    a("s_load_dwordx8 s[4:11], s[0:1], 0")
    a("s_load_dwordx2 s[26:27], s[0:1], 88")
    a("s_load_dwordx2 s[12:13], s[0:1], 32")
    a("s_load_dwordx8 s[16:23], s[0:1], 48")
    if stamps:
        for i in range(64, 96): a(f"s_mov_b32 s{i}, 0")
    stamp(0)
    if diag_fix: a("s_memrealtime s[64:65]")
    sT, sH, sS, sW, sCur, sNxt, sCnt, sX = "s36", "s37", "s38", "s39", "s40", "s41", "s42", "s43"
    sJ, sMode, sK, sG, sXg = "s49", "s52", "s53", "s54", "s55"
    sB, sPh, mPub = "s46", "s47", "s[44:45]"
    WS = "s[26:27]"
    bPD, bPL, bZ, bSP = "s[6:7]", "s[8:9]", "s[10:11]", "s[60:61]"
    mZ, mW3, mST = "s[62:63]", "s[24:25]", "s[12:13]"
    KS, VS, NS = "s[28:31]", "s[32:35]", "s[96:99]"
    vOf2, vLane, vOff, vZ = "v0", "v1", "v2", "v3"
    MK = [f"v{4+i}" for i in range(4)]
    Q = [f"v{8+i}" for i in range(4)]
    ACC = "v[12:15]"; ACCr = [f"v{12+i}" for i in range(4)]
    vL, vM = "v16", "v17"
    aOW, aMW, aOR, aMR, aOP, aSW, aI16 = [f"v{36+i}" for i in range(7)]
    aPM, aYW, aYR, aYP, aWO = "v43", "v44", "v45", "v46", "v47"
    aAL, aDN, aDD, aZW = "v56", "v57", "v58", "v59"
    aYL, aHW, aGU, aPW, aAW = "v43", "v44", "v45", "v46", "v47"
    aGD, aZL, aOUT = 56, "v58", "v59"
    vX = ["v60", "v61", "v62", "v63"]
    mH, mO = "v248", "v249"
    aCL, aCW, vS, CV = "v252", "v253", "v254", 52
    SET = [64 + 32 * i for i in range(5)]
    LS = SET[1]
    PB = 64; BW = 128; BDN = 192; GD = 160; ZB = 84; ZQ = 250
    a("v_lshrrev_b32 v3, 6, v0")
    a(f"v_and_b32 {vLane}, 63, v0")
    a(f"v_readfirstlane_b32 {sW}, v3")
    a(f"v_lshlrev_b32 {vOff}, 4, {vLane}")
    a("s_and_b32 s3, s2, 7"); a("s_lshl_b32 s3, s3, 2"); a("s_bfe_u32 s14, s2, 0x20003"); a(f"s_or_b32 {sH}, s3, s14")
    a(f"s_lshr_b32 {sS}, s2, 5")
    a(f"s_cmp_eq_u32 {sW}, 4"); a("s_cbranch_scc1 L_svc")
    a(f"s_and_b32 {sX}, {sH}, 15"); a(f"s_lshl_b32 {sX}, {sX}, 18")
    a(f"s_lshl_b32 s3, {sS}, 3"); a(f"s_add_u32 s3, s3, {sW}"); a("s_lshl_b32 s3, s3, 12")
    a(f"v_add_u32 {vOf2}, 0x4000, {vOff}")
    a(f"s_or_b32 {sX}, {sX}, s3")
    a(f"s_lshl_b32 s14, {sH}, 22")
    a(f"s_mov_b32 s30, {4<<20}"); a("s_mov_b32 s31, 0x20000")
    a("s_waitcnt lgkmcnt(0)")
    a("s_add_u32 s28, s6, s14"); a("s_addc_u32 s29, s7, 0")
    def ids():
        a(f"s_and_b32 {sXg}, s2, 7"); a(f"s_lshr_b32 {sK}, s2, 3"); a(f"s_and_b32 {sJ}, {sK}, 15")
        a(f"s_mov_b32 s48, {SPIN}")
    def issue(slotbase, k, srd, soff, tag):
        b = slotbase + 4 * k
        a(f"buffer_load_dwordx4 v[{b}:{b+3}], {vOff if k < 4 else vOf2}, {srd}, {soff} offen offset:{(k%4)*1024} {nt}", tag=tag)
    def bfround(d, s):
        a(f"v_cvt_pk_bf16_f32 {d}, {s}, {s}"); a(f"v_and_b32 {d}, 0xffff0000, {d}")
    WS_CTL = [f"quad_perm:[1,0,3,2] {FULL}", f"quad_perm:[2,3,0,1] {FULL}", f"row_half_mirror {FULL}", f"row_mirror {FULL}",
              "row_bcast:15 row_mask:0xa bank_mask:0xf", "row_bcast:31 row_mask:0xc bank_mask:0xf"]
    def wavesum63(regs):
        for ctl in WS_CTL:
            for r in regs: a(f"v_add_f32_dpp {r}, {r}, {r} {ctl}")
    def make_masks(t0, t1):
        a(f"v_and_b32 {t0}, 1, {vLane}"); a(f"v_lshlrev_b32 {t0}, 4, {t0}"); a(f"v_mov_b32 {t1}, 0xffff")
        a(f"v_lshlrev_b32 {t0}, {t0}, {t1}")
        a(f"v_bfe_u32 {t1}, {vLane}, 1, 2")
        for r in range(4):
            a(f"v_cmp_eq_u32 vcc, {r}, {t1}"); a(f"v_cndmask_b32 {MK[r]}, 0, {t0}, vcc")
    def tagcheck(acc, tags):
        for i, t in enumerate(tags):
            if i == 0: a(f"v_xor_b32 {acc}, {sT}, {t}")
            else: a(f"v_bitop3_b32 {acc}, {acc}, {sT}, {t} bitop3:0xf6")
    def mktag():
        a(f"s_mul_i32 {sG}, {sG}, 1664525"); a(f"s_add_u32 {sG}, {sG}, 1013904223")
        a(f"s_and_b32 {sT}, {sG}, 0xbfffbfff"); a(f"s_bitset1_b32 {sT}, 29")
    def poll_loop(name, loads, tags, acc, between=None, order=False):
        loads()
        if between: between()
        a.label(f"L_{name}_chk")
        if order and staged:
            nld = len(tags) // 2
            for i, t in enumerate(tags):
                if i % 2 == 0: a(f"s_waitcnt vmcnt({nld - 1 - i // 2})")
                if i == 0: a(f"v_xor_b32 {acc}, {sT}, {t}")
                else: a(f"v_bitop3_b32 {acc}, {acc}, {sT}, {t} bitop3:0xf6")
            a.vm = []
            a(f"v_cmp_ne_u32 vcc, 0, {acc}")
        elif len(tags) == 1:
            a.waitall()
            a(f"v_cmp_ne_u32 vcc, {sT}, {tags[0]}")
        else:
            a.waitall()
            tagcheck(acc, tags)
            a(f"v_cmp_ne_u32 vcc, 0, {acc}")
        a(f"s_cbranch_vccz L_{name}_got")
        a("s_mov_b64 exec, vcc")
        loads()
        a("s_mov_b64 exec, -1")
        a("s_sub_u32 s48, s48, 1"); a(f"s_cbranch_scc0 L_{name}_chk")
        a("s_mov_b32 s48, 0")
        a.waitall()
        a.label(f"L_{name}_got")
    def pipe_poll(name, NP, SG, nper, load, tags, take, between=None):
        for i in range(NP):
            load(i)
            if i == 0 and between: between()
            elif i < NP - 1: a(f"s_sleep {SG}")
        a.label(f"L_{name}_loop")
        for i in range(NP):
            a(f"s_waitcnt vmcnt({(NP-1)*nper})")
            tg = tags(i)
            if len(tg) == 1: a(f"v_cmp_ne_u32 vcc, {sT}, {tg[0]}")
            else: tagcheck("v52", tg); a("v_cmp_ne_u32 vcc, 0, v52")
            a(f"s_cbranch_vccz L_{name}_g{i}")
            load(i)
        a("s_sub_u32 s48, s48, 1"); a(f"s_cbranch_scc0 L_{name}_loop")
        a("s_mov_b32 s48, 0"); a("s_waitcnt vmcnt(0)"); a(f"s_branch L_{name}_g0")
        for i in range(NP - 1, -1, -1):
            a.label(f"L_{name}_g{i}")
            take(i)
            if i: a(f"s_branch L_{name}_got")
        a.label(f"L_{name}_got")
        a.vm = []
    def sbase(dst, off):
        lo = int(dst[2:dst.index(":")])
        a(f"s_add_u32 s{lo}, s26, {off}"); a(f"s_addc_u32 s{lo+1}, s27, 0")
    vC, vE, vG, vI, t0, t1 = "v18", "v19", "v20", "v21", "v22", "v23"
    def setup(pos, step):
        a.c("setup (in the shadow of the first loads)")
        a(f"s_load_dword {sG}, {WS}, {G_OFF}")
        a("s_add_u32 s32, s8, s14"); a("s_addc_u32 s33, s9, 0"); a(f"s_mov_b32 s34, {4<<20}"); a("s_mov_b32 s35, 0x20000")
        a(f"s_mov_b32 s98, {4<<20}"); a("s_mov_b32 s99, 0x20000")
        ids()
        if cw0:
            keep0 = list(a.vm); hk0 = a.hook; a.hook = None
            a(f"s_or_b32 s3, {sK}, {sW}"); a("s_cbranch_scc1 L_nocw0")
            a("s_getpc_b64 s[0:1]")
            a.raw("L_pc0:")
            a(f"v_lshlrev_b32 v22, 7, {vLane}"); a("v_add_u32 v23, 0x2000, v22")
            a("v_min_u32 v23, L_codeend-L_pc0-4, v23")
            a("global_load_dword v246, v22, s[0:1]"); a("global_load_dword v246, v23, s[0:1]")
            a.label("L_nocw0")
            a.vm = keep0; a.hook = hk0
        make_masks(t0, t1)
        for r in ACCr: a(f"v_mov_b32 {r}, 0")
        a(f"v_mov_b32 {vL}, 0"); a(f"v_mov_b32 {vM}, 0xff800000"); a(f"v_mov_b32 {vZ}, 0")
        a(f"v_mov_b32 v{ZQ}, 0"); a(f"v_mov_b32 v{ZQ+1}, 0")
        a(f"v_lshrrev_b32 {vC}, 3, {vLane}"); a(f"v_and_b32 {vE}, 7, {vLane}")
        a(f"v_lshrrev_b32 {vG}, 4, {vLane}"); a(f"v_and_b32 {vI}, 15, {vLane}")
        a(f"v_lshlrev_b32 {aI16}, 4, {vI}")
        a(f"s_lshl_b32 s3, {sW}, 12"); a(f"v_lshl_add_u32 {aSW}, {vLane}, 2, s3")
        a(f"v_and_b32 {t0}, 1, {vG}"); a(f"v_lshlrev_b32 {aOW}, 5, {vI}"); a(f"v_lshl_add_u32 {aOW}, {t0}, 4, {aOW}")
        a(f"s_mul_i32 s3, {sW}, {OS}"); a(f"v_add_u32 {aOW}, s3, {aOW}")
        a(f"s_lshl_b32 s3, {sW}, 3"); a(f"v_mov_b32 {aMW}, s3")
        a(f"v_and_b32 {t0}, 3, {vLane}"); a(f"v_mul_u32_u24 {aOR}, {OS}, {t0}"); a(f"v_lshrrev_b32 {t1}, 2, {vLane}")
        a(f"v_lshl_add_u32 {aOR}, {t1}, 3, {aOR}"); a(f"s_lshl_b32 s3, {sW}, 7"); a(f"v_add_u32 {aOR}, s3, {aOR}")
        a(f"v_lshlrev_b32 {aMR}, 3, {t0}")
        a(f"s_mul_i32 s3, {sH}, {OHS}"); a(f"s_lshl_b32 s14, {sW}, 10"); a("s_add_u32 s3, s3, s14"); a(f"s_lshl_b32 s14, {sS}, 4")
        a("s_add_u32 s3, s3, s14"); a(f"s_add_u32 s3, s3, {OP}")
        a(f"v_lshlrev_b32 {aOP}, 7, {vC}"); a(f"v_lshl_add_u32 {aOP}, {t0}, 12, {aOP}"); a(f"v_and_b32 v24, 1, {t1}")
        a(f"v_lshl_add_u32 {aOP}, v24, 3, {aOP}"); a(f"v_add_u32 {aOP}, s3, {aOP}")
        a(f"s_cmp_eq_u32 {sW}, 0"); a("s_mov_b32 s51, 0x11111111"); a("s_cselect_b32 s50, 0x11111133, s51")
        a(f"v_cmp_eq_u32 s[56:57], 1, {vLane}"); a(f"v_cmp_eq_u32 s[58:59], 5, {vLane}")
        a(f"s_lshl_b32 s3, {sXg}, 11"); a(f"s_add_u32 s3, s3, {SP}"); sbase(bSP, "s3")
        a(f"s_lshl_b32 s15, {sJ}, 1"); a(f"s_and_b32 s14, {sW}, 1"); a("s_add_u32 s15, s15, s14")
        a("s_lshl_b32 s3, s15, 10"); a(f"s_add_u32 s3, s3, {ZP}"); sbase(bZ, "s3")
        a(f"v_lshlrev_b32 {aCL}, 3, {vI}"); a(f"v_add_u32 {aCL}, {CP}, {aCL}")
        a(f"s_lshr_b32 s3, {sK}, 4"); a(f"s_lshl_b32 s14, {sXg}, 1"); a("s_add_u32 s3, s3, s14"); a("s_lshl_b32 s3, s3, 3"); a(f"s_add_u32 s3, s3, {CP}")
        a(f"v_mov_b32 {aCW}, s3")
        a(f"s_add_u32 s3, {sK}, {sXg}"); a("s_and_b32 s3, s3, 15"); a(f"s_or_b32 s3, s3, {sW}"); a(f"s_cselect_b64 {mPub}, 0, 1")
        a(f"s_mov_b64 {mZ}, 0")
        a(f"s_cmp_ge_u32 {sK}, 16"); a("s_cbranch_scc1 L_setB")
        keep = list(a.vm); p0 = pos[0]; NSTEP = 5 if inter else 0
        a(f"s_lshl_b32 s3, {sXg}, 2"); a(f"s_add_u32 s3, s3, {sW}"); a(f"s_mul_i32 s3, s3, {OHS}"); a(f"s_add_u32 s3, s3, {OP}"); sbase(bPD, "s3")
        a(f"v_lshl_add_u32 {aPM}, {vG}, 2, {vI}"); a(f"v_and_b32 {aPM}, 7, {aPM}"); a(f"v_lshlrev_b32 {aPM}, 4, {aPM}"); a(f"v_add_u32 {aPM}, 4096, {aPM}")
        a(f"v_mul_u32_u24 {aYW}, {YS}, {vI}"); a(f"v_lshl_add_u32 {aYW}, {vG}, 2, {aYW}"); a(f"s_lshl_b32 s3, {sW}, 4"); a(f"v_add_u32 {aYW}, s3, {aYW}")
        a(f"s_and_b32 s14, {sW}, 1")
        if ycopy:
            a(f"v_mul_u32_u24 {aYR}, {YS}, {vI}"); a(f"v_lshl_add_u32 {aYR}, {vG}, 4, {aYR}")
            a(f"s_mul_i32 s3, s14, {16*YS}"); a(f"v_add_u32 {aYR}, s3, {aYR}")
            a(f"s_lshr_b32 s3, {sW}, 1"); a("s_lshl_b32 s3, s3, 6"); a(f"s_add_u32 s3, s3, {sJ}")
            a("s_lshl_b32 s3, s3, 3"); a(f"s_add_u32 s3, s3, {sXg}"); a("s_lshl_b32 s3, s3, 1"); a("s_add_u32 s3, s3, s14"); a("s_lshl_b32 s3, s3, 7")
            a(f"s_add_u32 s3, s3, {YC}"); a(f"v_lshl_add_u32 {aYP}, {vI}, 3, s3"); a(f"v_lshl_add_u32 {aYP}, {vG}, 15, {aYP}")
        else:
            if yadj: a(f"v_mul_u32_u24 {aYR}, {YS}, {vI}"); a(f"v_lshl_add_u32 {aYR}, {vG}, 4, {aYR}")
            else: a(f"v_mul_u32_u24 {aYR}, {YS}, {t1}"); a(f"v_lshl_add_u32 {aYR}, {t0}, 4, {aYR}")
            a(f"s_mul_i32 s3, s14, {16*YS}"); a(f"v_add_u32 {aYR}, s3, {aYR}")
            a(f"s_lshl_b32 s3, {sJ}, 3"); a(f"s_add_u32 s3, s3, {sXg}"); a("s_lshl_b32 s3, s3, 1"); a("s_add_u32 s3, s3, s14"); a("s_lshl_b32 s3, s3, 7")
            a(f"s_add_u32 s3, s3, {YP}"); a(f"v_lshl_add_u32 {aYP}, {vI if yadj else t1}, 3, s3")
        a(f"v_bfe_u32 v24, {vLane}, 2, 2"); a(f"v_lshlrev_b32 {aWO}, 9, {vG}"); a(f"v_lshl_add_u32 {aWO}, v24, 6, {aWO}"); a(f"v_lshl_add_u32 {aWO}, {t0}, 3, {aWO}")
        a(f"s_lshl_b32 s3, {sW}, 13"); a(f"s_add_u32 s3, s3, {L_W}"); a(f"v_add_u32 {aWO}, s3, {aWO}")
        if zrd:
            a(f"v_mov_b32 v25, {L_ZERO}"); a("v_cmp_le_u32 vcc, 2, v24"); a(f"v_cndmask_b32 {aWO}, {aWO}, v25, vcc")
            a(f"s_lshl_b32 s3, {sW}, 11"); a(f"v_add_u32 v25, s3, {vOff}")
            a(f"ds_write_b128 v25, {ACC} offset:{L_ZERO}"); a(f"ds_write_b128 v25, {ACC} offset:{L_ZERO + 1024}")
        a(f"v_min_u32 v24, 13, {vI}"); a(f"v_mad_u32_u24 v24, {vG}, 14, v24"); a(f"v_lshlrev_b32 {aAL}, 4, v24")
        a(f"v_mul_u32_u24 {aDN}, 1792, {vG}"); a(f"v_lshl_add_u32 {aDN}, {vI}, 3, {aDN}")
        a("s_mul_i32 s3, s14, 7168"); a(f"s_add_u32 s3, s3, {L_DN}"); a(f"v_add_u32 {aDN}, s3, {aDN}")
        a(f"v_lshrrev_b32 v24, 1, {vLane}"); a("v_lshlrev_b32 v24, 10, v24"); a(f"v_and_b32 v25, 1, {vLane}"); a("v_lshl_add_u32 v24, v25, 4, v24")
        a(f"s_mul_i32 s3, {sXg}, {224*1024}"); a("s_lshl_b32 s14, s15, 5"); a("s_add_u32 s3, s3, s14"); a("s_add_u32 s3, s3, 3072"); a(f"v_add_u32 {aDD}, s3, v24")
        a(f"s_lshl_b32 s3, {sXg}, 7"); a(f"v_lshl_add_u32 {aZW}, {vLane}, 3, s3")
        assert pos[0] <= p0 + NSTEP, (pos[0], p0)
        hk = a.hook; a.hook = None
        while pos[0] < p0 + NSTEP: step()
        keepA = list(a.vm)
        a("s_branch L_setE")
        pos[0] = p0; a.vm = list(keep); a.hook = hk; a.hcount = 0
        a.label("L_setB")
        a(f"s_lshl_b32 s3, {sW}, 3"); a(f"v_add_u32 v24, s3, {vE if ycoal else vC}")
        a(f"v_lshlrev_b32 {aHW}, 1, v24")
        a(f"s_lshl_b32 s3, {sJ}, 6"); a("s_add_u32 s4, s4, s3"); a("s_addc_u32 s5, s5, 0")
        a(f"global_load_ushort {vX[0]}, {aHW}, s[4:5]")
        a("s_lshl_b32 s3, s15, 5"); a("s_add_u32 s22, s22, s3"); a("s_addc_u32 s23, s23, 0")
        a(f"s_lshl_b32 s3, {sJ}, 11"); a(f"s_add_u32 s3, s3, {YC if ycopy else YP}")
        if ycopy: a(f"s_lshl_b32 s14, {sXg}, 15"); a("s_add_u32 s3, s3, s14")
        a(f"v_lshlrev_b32 {aYL}, 8, {vC if ycoal else vE}"); a(f"v_lshl_add_u32 {aYL}, v24, 3, {aYL}"); a(f"v_add_u32 {aYL}, s3, {aYL}")
        a(f"v_lshlrev_b32 {vX[1]}, 4, {vG}")
        a(f"s_mul_i32 s3, {sXg}, {4*OHS}"); a(f"s_add_u32 s3, s3, {OP + 4096}")
        a(f"v_mul_u32_u24 {vX[2]}, {OHS}, {vG}"); a(f"v_lshl_add_u32 {vX[2]}, {vE}, 4, {vX[2]}"); a(f"v_add_u32 {vX[2]}, s3, {vX[2]}")
        if rowwise:
            a(f"v_bfe_u32 v24, {vLane}, 2, 3"); a(f"v_lshrrev_b32 v25, 5, {vLane}"); a("v_lshl_add_u32 v24, v25, 4, v24")
            a(f"v_mul_u32_u24 {aGU}, {PS}, v24"); a(f"v_lshl_add_u32 {aGU}, {t0}, 3, {aGU}")
            a(f"s_lshl_b32 s3, {sW}, 7"); a(f"s_add_u32 s3, s3, {L_W}"); a(f"v_add_u32 {aGU}, s3, {aGU}")
            a(f"s_lshr_b32 s3, {sW}, 1"); a("s_lshl_b32 s3, s3, 2"); a(f"s_and_b32 s14, {sW}, 1"); a("s_add_u32 s3, s3, s14")
            a(f"s_lshl_b32 s14, {sJ}, 3"); a("s_add_u32 s3, s3, s14"); a(f"s_mul_i32 s3, s3, {4*3584}")
            a(f"s_mul_i32 s14, {sXg}, 448"); a("s_add_u32 s3, s3, s14")
            a(f"v_and_b32 v24, 31, {vLane}"); a("v_lshl_add_u32 v24, v24, 4, s3")
        else:
            a(f"v_bfe_u32 v24, {vLane}, 2, 2"); a(f"v_mul_u32_u24 {aGU}, {PS}, v24"); a(f"v_lshl_add_u32 {aGU}, {t0}, 3, {aGU}"); a(f"v_lshl_add_u32 {aGU}, {vG}, 7, {aGU}")
            a(f"s_mul_i32 s3, {sW}, {8*PS}"); a(f"s_add_u32 s3, s3, {L_W}"); a(f"v_add_u32 {aGU}, s3, {aGU}")
            a(f"s_mul_i32 s3, {sJ}, {32*3584}"); a(f"s_mul_i32 s14, {sXg}, 448"); a("s_add_u32 s3, s3, s14"); a(f"s_lshl_b32 s14, {sW}, 7"); a("s_add_u32 s3, s3, s14")
            a(f"v_and_b32 v24, 3, {vC}"); a(f"v_mul_u32_u24 v24, {8*3584}, v24"); a(f"v_lshl_add_u32 v24, {vE}, 4, v24"); a("v_add_u32 v24, s3, v24")
        a(f"v_mov_b32 v{aGD}, s16"); a(f"v_mov_b32 v{aGD+1}, s17")
        hk1 = a.hook; a.hook = None
        a("s_mov_b32 exec_lo, 0"); a(f"v_mov_b32 v{aGD}, s18"); a(f"v_mov_b32 v{aGD+1}, s19"); a("s_mov_b32 exec_lo, -1")
        a.hook = hk1
        a(f"v_add_co_u32 v{aGD}, vcc, v{aGD}, v24"); a(f"v_addc_co_u32 v{aGD+1}, vcc, 0, v{aGD+1}, vcc")
        a(f"s_lshl_b32 s3, {sW}, 2"); a(f"v_add_u32 v24, s3, {vG}")
        a(f"s_mul_i32 s3, {sXg}, {14*PRS}"); a(f"s_lshl_b32 s14, {sJ}, 8"); a("s_add_u32 s3, s3, s14"); a(f"s_add_u32 s3, s3, {PP}")
        a(f"v_mul_u32_u24 {aPW}, {PRS}, v24"); a(f"v_add3_u32 {aPW}, {aPW}, {aI16}, s3")
        a(f"s_lshl_b32 s3, {sXg}, 11"); a(f"s_lshl_b32 s14, {sJ}, 4"); a("s_add_u32 s3, s3, s14"); a(f"s_add_u32 s3, s3, {SP}")
        a("v_mov_b32 v25, s3"); a("v_add_u32 v26, 512, v25")
        a("v_cmp_le_u32 vcc, 14, v24"); a(f"v_cndmask_b32 {aPW}, {aPW}, v26, vcc")
        a(f"v_cmp_eq_u32 {mST}, 14, v24"); a(f"v_cndmask_b32 {aPW}, {aPW}, v25, {mST}")
        a(f"s_mul_i32 s3, {sXg}, 14"); a(f"s_add_u32 s3, s3, {sJ}"); a(f"s_mul_i32 s3, s3, {PRS}"); a(f"s_add_u32 s3, s3, {PP}"); sbase(bPL, "s3")
        a(f"s_lshl_b32 s3, {sJ}, 6"); a(f"v_lshl_add_u32 {aAW}, {vLane}, 2, s3")
        a(f"v_lshlrev_b32 {aZL}, 7, {vG}"); a(f"v_lshl_add_u32 {aZL}, {vI}, 3, {aZL}")
        a(f"v_lshlrev_b32 {aOUT}, 1, {vI}")
        a(f"v_and_b32 v24, 1, {vLane}"); a("v_cmp_eq_u32 vcc, 0, v24"); a(f"v_cndmask_b32 {mH}, 0, -1, vcc")
        a("v_mov_b32 v25, 0x3f803f80"); a(f"v_cndmask_b32 {mO}, v25, 0, vcc")
        if ldsA:
            a(f"v_cndmask_b32 {mH}, 64, {vX[1]}, vcc")
            a(f"v_lshlrev_b32 v24, 2, {t0}"); a(f"ds_write_b32 v24, v25 offset:{L_ONE}")
        a(f"s_cmp_eq_u32 {sW}, 3"); a(f"s_cselect_b64 {mW3}, -1, 0")
        a(f"s_and_b32 s3, {sJ}, 7"); a(f"s_xor_b32 s3, s3, {sXg}"); a(f"s_lshr_b32 s14, {sW}, 1"); a("s_xor_b32 s14, s14, 1"); a("s_or_b32 s3, s3, s14")
        a(f"s_cselect_b64 {mZ}, 0, -1")
        assert pos[0] <= p0 + NSTEP, (pos[0], p0)
        a.hook = None
        while pos[0] < p0 + NSTEP: step()
        a.label("L_setE")
        a.vm = keepA
        a("s_waitcnt lgkmcnt(0)")
        mktag()
        a(f"v_mov_b32 v49, {sT}"); a(f"v_mov_b32 v51, {sT}")
    seq = [(n, k) for n in range(NPRE) for k in range(8)]
    pos = [0]
    def step():
        i = pos[0]; pos[0] += 1
        n, k = seq[i]
        if i >= PD0: a.raw(f"    s_waitcnt vmcnt({PD-1})")
        b = SET[n] + 4 * k
        a(f"buffer_load_dwordx4 v[{b}:{b+3}], {vOff if k < 4 else vOf2}, {KS}, {SOFF[n]} offen offset:{(k%4)*1024} {nt}", tag=f"u{n}k{k}")
    SOFF = [sX, sCur, sNxt, sCnt, "s96"]
    for i in range(PD0): step()
    for n in range(1, NPRE): a(f"s_xor_b32 {SOFF[n]}, {sX}, {n<<18}")
    if inter:
        a.hook = (step, inter, ifirst)
    setup(pos, step)
    a.hook = None
    while pos[0] < len(seq): step()
    stamp(1)
    a("s_barrier")
    a(f"ds_read_b128 v[8:11], {aI16} offset:{L_Q}")
    a(f"ds_read_b32 v22, {vZ} offset:{L_MODE}")
    a("s_memrealtime s[4:5]")
    stamp(2)
    BETA = [0, 2, 1, 3]
    def kbody(base, tags, after, pre, soff):
        for hf in range(2):
            T = [f"v{18+i}" for i in range(4)]
            for i in range(4):
                k = 4 * hf + i
                a.wait(tags[k])
                if pre: after(k)
                b = base + 4 * k
                for r in range(4):
                    a(f"v_dot2_f32_bf16 {T[i]}, v{b+r}, {Q[r]}, {'0' if r == 0 else T[i]}")
                if not pre: after(k)
            y = f"v{24+hf}"
            a(f"v_add_f32_dpp v22, {T[0]}, {T[0]} row_ror:8 {FULL}")
            a(f"v_add_f32_dpp v23, {T[2]}, {T[2]} row_ror:8 {FULL}")
            a(f"v_add_f32_dpp v22, {T[1]}, {T[1]} row_ror:8 row_mask:0xf bank_mask:0xc")
            a(f"v_add_f32_dpp v23, {T[3]}, {T[3]} row_ror:8 row_mask:0xf bank_mask:0xc")
            a(f"v_add_f32_dpp {y}, v22, v22 row_shl:4 row_mask:0xf bank_mask:0x5")
            a(f"v_add_f32_dpp {y}, v23, v23 row_shr:4 row_mask:0xf bank_mask:0xa")
            a(f"v_add_f32_dpp {y}, {y}, {y} quad_perm:[1,0,3,2] {FULL}")
            a(f"v_add_f32_dpp {y}, {y}, {y} quad_perm:[2,3,0,1] {FULL}")
        a("v_cvt_pk_bf16_f32 v24, v24, v25")
        a("v_and_b32 v25, 0xffff0000, v24"); a("v_lshlrev_b32 v24, 16, v24")
        a(f"v_mul_f32 v24, {SCALE}, v24"); a(f"v_mul_f32 v25, {SCALE}, v25")
        a("v_cvt_pk_bf16_f32 v26, v24, v25")
        a(f"ds_write_b32 {aSW}, v26 offset:{L_S + soff}")
        a("v_and_b32 v25, 0xffff0000, v26"); a("v_lshlrev_b32 v24, 16, v26")
        a(f"v_max3_f32 {vM}, {vM}, v24, v25")
    def vbody(base, tags, after, last):
        a("v_and_b32 v25, 0xffff0000, v26"); a("v_lshlrev_b32 v24, 16, v26")
        if not last:
            a(f"v_add_u32 {aSW}, 256, {aSW}")
            a(f"ds_read_b32 v26, {aSW} offset:{L_S}")
        a(f"v_sub_f32 v24, v24, {vM}"); a(f"v_sub_f32 v25, v25, {vM}")
        a(f"v_mul_f32 v24, {LOG2E}, v24"); a(f"v_mul_f32 v25, {LOG2E}, v25")
        a("v_exp_f32 v24, v24"); a("v_exp_f32 v25, v25")
        a(f"v_add_f32 {vL}, {vL}, v24")
        a("v_cvt_pk_bf16_f32 v22, v24, v24"); a("v_cvt_pk_bf16_f32 v23, v25, v25")
        a(f"v_add_f32 {vL}, {vL}, v25")
        if last:
            a(f"v_add_f32_dpp {vL}, {vL}, {vL} row_ror:4 {FULL}")
            a(f"v_add_f32_dpp {vL}, {vL}, {vL} row_ror:8 {FULL}")
            a(f"v_add_f32_dpp {vL}, {vL}, {vL} row_bcast:15 row_mask:0xa bank_mask:0xf")
            a(f"v_add_f32_dpp {vL}, {vL}, {vL} row_bcast:31 row_mask:0xc bank_mask:0xf")
            a("s_mov_b32 exec_lo, 0"); a("s_mov_b32 exec_hi, 0x80000000")
            a(f"ds_write_b32 {aMW}, {vL} offset:{L_ML}" if wgmax else f"ds_write_b64 {aMW}, v[16:17] offset:{L_ML}")
            a("s_mov_b64 exec, -1")
        for k in range(8):
            A = 28 + 4 * (k % 2)
            for r in range(4): a(f"v_and_b32_dpp v{A+r}, v{22 + k//4}, {MK[r]} row_newbcast:{4*BETA[k%4]} {FULL}")
            a.wait(tags[k])
            after(k)
            b = base + 4 * k
            a(f"v_mfma_f32_16x16x32_bf16 {ACC}, v[{A}:{A+3}], v[{b}:{b+3}], {ACC}")
    nl = [0]
    def cpub():
        a("v_mov_b32 v50, s4"); a(f"s_mov_b64 exec, {mPub}")
        a(f"s_cbranch_execz L_np{nl[0]}")
        a(f"global_store_dwordx2 {aCW}, v[50:51], {WS} sc1")
        a.label(f"L_np{nl[0]}"); nl[0] += 1
        a("s_mov_b64 exec, -1"); a(f"v_add_u32 {aCW}, 128, {aCW}")
    def cload():
        a("s_mov_b64 exec, 0xffff")
        a(f"global_load_dwordx2 v[{CV}:{CV+1}], {aCL}, {WS} sc1")
        a("s_mov_b64 exec, -1"); a(f"v_add_u32 {aCL}, 128, {aCL}")
    def cavg(add16, skip):
        a(f"v_cmp_eq_u32 vcc, {sT}, v{CV+1}")
        a(f"v_subrev_u32 v{CV}, s4, v{CV}")
        a(f"v_cndmask_b32 v{CV}, 0, v{CV}, vcc")
        a("s_and_b32 s14, vcc_lo, 0xffff"); a("s_bcnt1_i32_b32 s14, s14"); a(f"s_cbranch_scc0 {skip}")
        a(f"v_cvt_f32_i32 v{CV}, v{CV}"); a(f"v_cvt_f32_u32 v{CV+2}, s14"); a(f"v_rcp_f32 v{CV+2}, v{CV+2}")
        for ctl in WS_CTL[:4]: a(f"v_add_f32_dpp v{CV}, v{CV}, v{CV} {ctl}")
        a(f"v_mul_f32 v{CV+2}, 0x41800000, v{CV+2}")
        a(f"v_mul_f32 v{CV}, v{CV}, v{CV+2}"); a(f"v_cvt_i32_f32 v{CV}, v{CV}")
        a("s_lshl_b32 s14, s4, 4"); a("s_sub_u32 s14, s14, s15"); a(f"s_add_u32 s14, s14, {add16 & 0xffffffff}")
        a(f"v_readfirstlane_b32 s3, v{CV}")
        a("s_add_u32 s3, s3, s14"); a("s_or_b32 s3, s3, 1")
        a(f"v_mov_b32 v{CV}, s3"); a(f"ds_write_b32 {vZ}, v{CV} offset:{L_MODE+4}")
    a(f"s_xor_b32 {sNxt}, {sX}, {NPRE<<18}")
    a(f"s_xor_b32 {sCur}, {sX}, {(NPRE+1)<<18}")
    a("s_waitcnt lgkmcnt(0)")
    a(f"v_readfirstlane_b32 {sMode}, v22")
    a(f"s_add_u32 s4, s4, {int(round(CU - LD*tau2)) & 0xffffffff}")
    keep = list(a.vm); cpub(); a.vm = keep
    a.c("catch up on the prefetched K blocks")
    for n in range(NPRE + 1):
        def after(k, n=n):
            if smooth:
                st = 8 * n + k; NI = 8 + D; last = 8 * NPRE + 7
                for j in range(NI):
                    if int(round(j * last / (NI - 1))) == st:
                        assert st >= j
                        a.raw(f"    s_waitcnt vmcnt({smooth-1})")
                        if j < 8: issue(SET[0], j, KS, sNxt, f"u{NPRE}k{j}")
                        else: issue(LS, j - 8, KS, sCur, f"c{j-8}")
                return
            if n == 0: issue(SET[0], k, KS, sNxt, f"u{NPRE}k{k}")
            if n == REFILL and k < DI: issue(LS, k, KS, sCur, f"c{k}")
            if n == NPRE and DI <= k < D: issue(LS, k, KS, sCur, f"c{k}")
        kbody(SET[n % NPRE], [f"u{n}k{k}" for k in range(8)], after, False, n * 256)
    a(f"v_add_u32 {aSW}, {(NPRE+1)*256}, {aSW}")
    a(f"s_mov_b32 {sCnt}, {NPRE+1}")
    stamp(11)
    loopvm = [f"c{k}" for k in range(D)]
    assert a.vm == loopvm, a.vm
    ctags = [f"c{k}" for k in range(8)]
    oolb = []
    def control(tau, nm):
        t16 = int(round(tau*16))
        a("s_waitcnt lgkmcnt(0)")
        if trace:
            a("v_writelane_b32 v247, s4, m0"); a("s_add_u32 m0, m0, 1")
        a(f"v_readfirstlane_b32 s3, {vS}")
        a(f"s_lshr_b32 {sB}, {sB}, 1"); a(f"s_bitcmp1_b32 {sB}, 0"); a(f"s_cbranch_scc1 L_cp{nm}")
        a.label(f"L_cb{nm}")
        def blocks():
            a.label(f"L_cp{nm}")
            a(f"s_add_u32 {sPh}, {sPh}, 1"); a(f"s_cmp_eq_u32 {sPh}, 2"); a(f"s_cbranch_scc1 L_cp1{nm}")
            a(f"s_cmp_eq_u32 {sPh}, 3"); a(f"s_cbranch_scc1 L_cp2{nm}")
            cpub()
            a(f"s_branch L_cb{nm}")
            a.label(f"L_cp1{nm}")
            cload()
            a(f"s_branch L_cb{nm}")
            a.label(f"L_cp2{nm}")
            a(f"s_mov_b32 {sPh}, 0")
            cavg((LD+1)*t16 + BIAS*16, f"L_cb{nm}")
            a(f"s_branch L_cb{nm}")
        oolb.append(blocks)
        a("s_lshl_b32 s14, s4, 4"); a("s_sub_u32 s14, s14, s15"); a("s_sub_u32 s14, s14, s3"); a(f"s_add_u32 s15, s15, {t16}")
        if BOFF and nm == "v": a("s_add_u32 s14, s14, s97")
        a("s_cmp_eq_u32 s3, 0"); a("s_cselect_b32 s14, 0, s14")
        th, tl = TK if (TK and nm == "k") else (THR, THL)
        if BK and nm == "k": a(f"s_add_u32 s14, s14, {(BK*16) & 0xffffffff}")
        if len(WW) == 3:
            a(f"s_cmp_le_i32 s14, {th*16}"); a("s_cselect_b64 vcc, -1, 0")
            if stamps:
                a("s_cselect_b32 s3, 0, 0x100"); a("s_add_u32 s95, s95, s3")
                a(f"s_cmp_lt_i32 s14, {-tl*16}"); a("s_addc_u32 s95, s95, 0")
            a(f"s_cmp_lt_i32 s14, {-tl*16}")
        else:
            a("s_cmp_le_i32 s14, 0"); a("s_cselect_b64 vcc, -1, 0"); a(f"s_mov_b32 s3, {th*16}"); a(f"s_cselect_b32 s3, {-tl*16}, s3")
            a("s_cmp_lt_i32 s14, s3")
        a.vm = list(loopvm)
    def mkafter(cs, ns):
        def after(k):
            i = nl[0]; nl[0] += 1
            if wv(WW[-1], k) < D: a.raw(f"    s_waitcnt vmcnt({wv(WW[-1], k)-1})")
            if len(WW) == 3:
                a.raw(f"    s_cbranch_vccz L_t{i}"); a.raw(f"    s_waitcnt vmcnt({wv(WW[1], k)-1})")
                a.raw(f"    s_cbranch_scc0 L_t{i}"); a.raw(f"    s_waitcnt vmcnt({wv(WW[0], k)-1})")
            else:
                a.raw(f"    s_cbranch_vccz L_u{i}"); a.raw(f"    s_waitcnt vmcnt({wv(WW[1], k)-1})")
                a.raw(f"    s_cbranch_scc0 L_t{i}"); a.raw(f"    s_waitcnt vmcnt({wv(WW[0], k)-1})")
                a.raw(f"L_u{i}:")
                a.raw(f"    s_cbranch_scc0 L_t{i}"); a.raw(f"    s_waitcnt vmcnt({wv(WW[2], k)-1})")
            a.raw(f"L_t{i}:")
            if k == 7: a("s_memrealtime s[4:5]"); a(f"ds_read_b32 {vS}, {vZ} offset:{L_MODE+4}")
            kk = k + D
            if kk < 8: issue(LS, kk, cs, sCur, f"c{kk}")
            else: issue(LS, kk - 8, ns, sNxt, f"n{kk-8}")
        return after
    a("s_memrealtime s[4:5]")
    ev = 6
    for n in range(2, 25):
        if (n - 2) % PER in (0, LD, LD + 1): ev |= 2 << n
    a(f"s_cmp_eq_u32 {sW}, 0"); a(f"s_cselect_b32 {sB}, {ev}, 0"); a(f"s_mov_b32 {sPh}, 1"); a("s_mov_b32 s15, 0")
    a(f"ds_read_b32 {vS}, {vZ} offset:{L_MODE+4}")
    if trace: a("s_mov_b32 m0, 0"); a("v_mov_b32 v247, 0")
    a.label("L_kloop")
    a(f"s_add_u32 {sCnt}, {sCnt}, 1"); a(f"s_and_b32 {sCnt}, {sCnt}, 15")
    a("s_cselect_b32 s96, s28, s32"); a("s_cselect_b32 s97, s29, s33")
    a(f"s_lshl_b32 s3, {sCnt}, 18"); a(f"s_xor_b32 {sNxt}, {sX}, s3")
    control(tau2, "k")
    kbody(LS, ctags, mkafter(KS, NS), True, 0)
    assert a.vm == [f"n{k}" for k in range(D)], a.vm
    a(f"v_add_u32 {aSW}, 256, {aSW}")
    a(f"s_mov_b32 {sCur}, {sNxt}")
    a(f"s_cmp_lg_u32 {sCnt}, 0"); a("s_cbranch_scc1 L_kloop")
    stamp(13)
    a(f"v_subrev_u32 {aSW}, {16*256}, {aSW}")
    a(f"v_max_f32_dpp {vM}, {vM}, {vM} row_ror:4 {FULL}")
    a(f"ds_read_b32 v26, {aSW} offset:{L_S}")
    a(f"v_max_f32_dpp {vM}, {vM}, {vM} row_ror:8 {FULL}")
    a(f"s_cmp_lt_u32 {sK}, 16"); a(f"s_cselect_b32 s96, {PRB}, 99")
    if BOFF: a(f"s_mov_b32 s97, {BOFF*16}"); a(f"s_cselect_b32 s97, {-BOFF*16}, s97")
    a(f"v_max_f32_dpp {vM}, {vM}, {vM} row_bcast:15 row_mask:0xa bank_mask:0xf")
    a(f"v_max_f32_dpp {vM}, {vM}, {vM} row_bcast:31 row_mask:0xc bank_mask:0xf")
    a(f"v_readlane_b32 s3, {vM}, 63")
    a(f"v_mov_b32 {vM}, s3")
    if nobar:
        a(f"v_lshrrev_b32 v28, 1, {aMW}"); a(f"ds_write_b32 v28, {vM} offset:{L_MX}")
    elif wgmax:
        a(f"ds_write_b32 {aMW}, {vM} offset:{L_ML+4}")
        a("s_waitcnt lgkmcnt(0)"); a("s_barrier")
        a(f"ds_read_b128 v[28:31], {vZ} offset:{L_ML}"); a(f"ds_read_b128 v[32:35], {vZ} offset:{L_ML+16}")
        a("s_waitcnt lgkmcnt(0)")
        a("v_max_f32 v29, v29, v31"); a(f"v_max3_f32 {vM}, v29, v33, v35")
    elif warm:
        a(f"s_cmp_ge_u32 {sK}, 16"); a("s_cbranch_scc1 L_vloop2")
        a("s_barrier")
    a.label("L_vloop")
    a(f"s_cmp_eq_u32 {sCnt}, {PRB if nobar else 's96'}"); a("s_cbranch_scc1 L_prep")
    a.label("L_vloop2")
    a(f"s_add_u32 {sCnt}, {sCnt}, 1")
    a(f"s_lshl_b32 s3, {sCnt}, 18"); a(f"s_xor_b32 {sNxt}, {sX}, s3")
    control(tau, "v")
    vbody(LS, ctags, mkafter(VS, VS), False)
    assert a.vm == [f"n{k}" for k in range(D)], a.vm
    a(f"s_mov_b32 {sCur}, {sNxt}")
    a(f"s_cmp_lt_u32 {sCnt}, 15")
    a.noflush_mfma = True
    a("s_cbranch_scc1 L_vloop")
    a.noflush_mfma = False
    a.vm = list(loopvm)
    stamp(14)
    for k in range(D, 8): issue(LS, k, VS, sCur, f"c{k}")
    def zloads():
        for n in range(2):
            if zatom: a(f"global_atomic_add_x2 v[{ZB+2*n}:{ZB+2*n+1}], {aZL}, v[{ZQ}:{ZQ+1}], {bZ} offset:{512*n} sc0 sc1", tag="zl")
            else: a(f"global_load_dwordx2 v[{ZB+2*n}:{ZB+2*n+1}], {aZL}, {bZ} offset:{512*n} sc1", tag="zl")
    a("s_waitcnt lgkmcnt(0)")
    vbody(LS, ctags, lambda k: None, True)
    stamp(3)
    a.c("T1")
    a(f"ds_write_b128 {aOW}, {ACC} offset:{L_O}")
    a(f"s_cmp_eq_u32 {sMode}, 1")
    a("s_waitcnt lgkmcnt(0)"); a("s_barrier")
    if wgmax:
        a(f"ds_read_b64 v[52:53], {aOR} offset:{L_O}")
        a(f"ds_read_b32 v54, {aMR} offset:{L_ML}")
        a("s_waitcnt lgkmcnt(0)")
    else:
        a(f"ds_read_b64 v[54:55], {aMR} offset:{L_ML}")
        a(f"ds_read_b64 v[52:53], {aOR} offset:{L_O}")
        a(f"s_waitcnt lgkmcnt({0 if stamps else 1})")
        a(f"v_max_f32_dpp v18, v55, v55 quad_perm:[1,0,3,2] {FULL}")
        a(f"v_max_f32_dpp v18, v18, v18 quad_perm:[2,3,0,1] {FULL}")
        a("v_sub_f32 v55, v55, v18"); a(f"v_mul_f32 v55, {LOG2E}, v55"); a("v_exp_f32 v55, v55")
        a("s_waitcnt lgkmcnt(0)")
        for r in ("v52", "v53", "v54"): a(f"v_mul_f32 {r}, {r}, v55")
    for ctl in ("quad_perm:[1,0,3,2]", "quad_perm:[2,3,0,1]"):
        for r in ("v52", "v53", "v54"): a(f"v_add_f32_dpp {r}, {r}, {r} {ctl} {FULL}")
    a("v_cvt_pk_bf16_f32 v50, v52, v53")
    a(f"v_cndmask_b32 v50, v50, {vM if wgmax else 'v18'}, s[56:57]"); a("v_cndmask_b32 v50, v50, v54, s[58:59]")
    a("s_mov_b64 exec, s[50:51]")
    a("s_cbranch_scc0 L_oslow")
    a(f"global_store_dwordx2 {aOP}, v[50:51], {WS}")
    a.label("L_osback")
    a("s_mov_b64 exec, -1")
    stamp(4)
    a(f"s_cmp_ge_u32 {sK}, 16"); a("s_cbranch_scc1 L_B")
    a.c("A: T2")
    def oloads():
        a(f"global_load_dwordx4 v[{PB+16}:{PB+19}], {aPM}, {bPD} sc1")
        for n in range(4): a(f"global_load_dwordx4 v[{PB+4*n}:{PB+4*n+3}], {vOff}, {bPD} offset:{n*1024} sc1")
    poll_loop("o", oloads, [f"v{PB+1+2*i}" for i in (8, 9, 0, 1, 2, 3, 4, 5, 6, 7)], "v52", order=True)
    stamp(5)
    vm_, vl_ = f"v{PB+16}", f"v{PB+18}"
    def flagstore():
        a(f"s_lshl_b32 s3, {sJ}, 2"); a("v_mov_b32 v53, s3"); a("s_mov_b64 exec, 1")
        a(f"s_cmp_eq_u32 {sMode}, 1"); a("s_cbranch_scc0 L_fl1")
        a(f"global_store_dword v53, v51, {bSP} offset:768"); a("s_branch L_fl2")
        a.label("L_fl1")
        a(f"global_store_dword v53, v51, {bSP} offset:768 sc1")
        a.label("L_fl2")
    TD = 96
    def post(cb):
        d = TD + 8 * cb
        L = [f"v_mov_b32_dpp v{d+r}, v{d+4+r} {ID} row_mask:0xc bank_mask:0xf" for r in range(4)]
        L.append(f"v_mul_f32_dpp v{52+cb}, {vm_}, v{d} row_newbcast:0 {FULL}")
        L += [f"v_fmac_f32_dpp v{52+cb}, {vm_}, v{d+r} row_newbcast:{r} {FULL}" for r in range(1, 4)]
        L.append(f"ds_write_b32 {aYW}, v{52+cb} offset:{L_Y + cb*16*YS}")
        return L
    p0 = post(0)
    filler = [
        [f"v_max_f32_dpp v54, {vm_}, {vm_} quad_perm:[1,0,3,2] {FULL}"], [],
        [f"v_max_f32_dpp v54, v54, v54 quad_perm:[2,3,0,1] {FULL}"], [],
        [f"v_max_f32_dpp v54, v54, v54 row_half_mirror {FULL}", f"v_sub_f32 {vm_}, {vm_}, v54"],
        [f"v_mul_f32 {vm_}, {LOG2E}, {vm_}", f"v_exp_f32 {vm_}, {vm_}"],
        [f"v_mul_f32 {vl_}, {vl_}, {vm_}"], [],
        [f"v_add_f32_dpp {vl_}, {vl_}, {vl_} quad_perm:[1,0,3,2] {FULL}"], [],
        [f"v_add_f32_dpp {vl_}, {vl_}, {vl_} quad_perm:[2,3,0,1] {FULL}"], [],
        [f"v_add_f32_dpp {vl_}, {vl_}, {vl_} row_half_mirror {FULL}", f"v_rcp_f32 {vl_}, {vl_}"],
        [p0[0], f"v_mul_f32 {vm_}, {vm_}, {vl_}"],
        p0[1:3],
        p0[3:5],
    ]
    for i in range(16):
        cb, n, c0 = i >> 3, (i >> 1) & 3, i & 1
        d = TD + 8 * cb + 4 * c0; b = BW + 4 * i
        for x in filler[i]: a(x)
        a(f"v_mfma_f32_16x16x32_bf16 v[{d}:{d+3}], v[{PB+4*n}:{PB+4*n+3}], v[{b}:{b+3}], {'0' if n == 0 else f'v[{d}:{d+3}]'}")
    for x in p0[5:] + post(1): a(x)
    a(f"s_cmp_ge_u32 {sW}, 2")
    a("s_waitcnt lgkmcnt(0)"); a("s_barrier")
    if ycopy:
        a(f"ds_read_b128 v[52:55], {aYR} offset:{L_Y}")
        a("s_waitcnt lgkmcnt(0)")
        a("v_add_f32 v52, v52, v53"); a("v_add_f32 v54, v54, v55")
        a("v_add_f32 v53, v52, v54"); a("v_add_f32 v52, v52, v54")
        a("v_permlane16_swap_b32 v52, v53")
        a("v_add_f32 v54, v52, v53"); a("v_add_f32 v52, v52, v53")
        a("v_permlane32_swap_b32 v52, v54")
        a("v_add_f32 v50, v52, v54")
        a(f"global_store_dwordx2 {aYP}, v[50:51], {WS} sc1")
        stamp(6)
        if yflag:
            a("s_cbranch_scc1 L_dn2"); flagstore(); a("s_branch L_fin"); a.label("L_dn2")
        else: a("s_cbranch_scc0 L_fin")
        a(f"s_and_b32 s3, {sW}, 1"); a("s_mul_i32 s3, s3, 7168"); a(f"s_add_u32 m0, s3, {L_DN + 3072}")
        a("s_waitcnt vmcnt(0)")
    else:
        a("s_cbranch_scc1 L_down")
        a(f"ds_read_b128 v[52:55], {aYR} offset:{L_Y}")
        a("s_mov_b32 s50, s51")
        a("s_waitcnt lgkmcnt(0)")
        a("v_add_f32 v52, v52, v53"); a("v_add_f32 v54, v54, v55")
        if yadj:
            a("v_add_f32 v53, v52, v54"); a("v_add_f32 v52, v52, v54")
            a("v_permlane16_swap_b32 v52, v53")
            a("v_add_f32 v54, v52, v53"); a("v_add_f32 v52, v52, v53")
            a("v_permlane32_swap_b32 v52, v54")
            a("s_mov_b64 exec, 0xffff")
            a("v_add_f32 v50, v52, v54")
        else:
            a("v_add_f32 v52, v52, v54")
            a(f"v_add_f32_dpp v52, v52, v52 quad_perm:[1,0,3,2] {FULL}")
            a(f"v_add_f32_dpp v50, v52, v52 quad_perm:[2,3,0,1] {FULL}")
            a("s_mov_b64 exec, s[50:51]")
        a(f"global_store_dwordx2 {aYP}, v[50:51], {WS} sc1")
        stamp(6)
        if yflag == 1: flagstore()
        a("s_waitcnt vmcnt(0)")
        a("s_barrier")
        a("s_branch L_fin")
        a.label("L_down")
        if yflag == 2: flagstore(); a("s_mov_b64 exec, -1")
        a(f"s_and_b32 s3, {sW}, 1"); a("s_mul_i32 s3, s3, 7168"); a(f"s_add_u32 m0, s3, {L_DN + 3072}")
        a("s_barrier")
    if DND > 0: a(f"s_sleep {DND}")
    for t in range(7 if DND >= 0 else 0):
        a(f"global_load_lds_dwordx4 {aDD}, s[20:21] offset:{t*1024-3072} {ont}")
        if t < 6: a(f"v_add_u32 {aDD}, {0x8000 - 1024}, {aDD}")
    p = PB
    def aloads(): a(f"global_load_dwordx4 v[{p}:{p+3}], {aAL}, {bSP} offset:1024 sc1")
    def abetween():
        a("s_waitcnt vmcnt(1)")
        for m in range(7):
            for hh in range(2):
                b = BDN + 4 * m + 2 * hh
                a(f"ds_read_b64_tr_b16 v[{b}:{b+1}], {aDN} offset:{(8*m + 4*hh)*32}")
        a("s_waitcnt lgkmcnt(0)")
    poll_loop("a", aloads, [f"v{p+1}", f"v{p+3}"], "v52", between=abetween)
    stamp(12)
    AO = 96
    for m in range(7):
        for r in range(4): a(f"v_mov_b32_dpp v{AO+4*m+r}, v{p + 2*(r&1)} row_newbcast:{2*m + (r>>1)} {FULL}")
        if m > 0:
            d = "v[28:31]" if (m - 1) % 2 == 0 else "v[32:35]"
            a(f"v_mfma_f32_16x16x32_bf16 {d}, v[{AO+4*(m-1)}:{AO+4*(m-1)+3}], v[{BDN+4*(m-1)}:{BDN+4*(m-1)+3}], {'0' if m <= 2 else d}")
    a(f"v_mfma_f32_16x16x32_bf16 v[28:31], v[{AO+24}:{AO+27}], v[{BDN+24}:{BDN+27}], v[28:31]")
    a("s_mov_b64 exec, 0xffff")
    a("v_add_f32 v50, v28, v32")
    a(f"global_store_dwordx2 {aZW}, v[50:51], {bZ} sc1")
    stamp(13)
    a("s_branch L_fin")
    a.label("L_B")
    a.c("B: stage gate/up rows, gather y, gate/up partials")
    a(f"s_mul_i32 s3, {sW}, {8*PS}"); a(f"s_add_u32 m0, s3, {L_W}")
    if YE or tfirst:
        a(f"global_atomic_add_x2 v[{PB}:{PB+1}], {aYL}, v[{ZQ}:{ZQ+1}], {WS} sc0 sc1")
        a(f"s_mov_b64 exec, {mZ}"); a("s_cbranch_execz L_nozt"); zloads(); a.label("L_nozt")
    if rowwise: a("s_mov_b32 exec_lo, 0x0fffffff"); a("s_mov_b32 exec_hi, 0x0fffffff")
    else: a(f"s_cmp_eq_u32 {sW}, 3"); a("s_cselect_b32 exec_lo, 0x0f0f0f0f, -1"); a("s_mov_b32 exec_hi, exec_lo")
    for t in range(8):
        a(f"global_load_lds_dwordx4 v[{aGD}:{aGD+1}], off {fnt}")
        if t < 7:
            a(f"v_add_co_u32 v{aGD}, vcc, {5*3584 if (rowwise and t == 3) else 3584}, v{aGD}"); a(f"s_add_u32 m0, m0, {PS}"); a(f"v_addc_co_u32 v{aGD+1}, vcc, 0, v{aGD+1}, vcc")
    if zlast and not (YE or tfirst):
        a(f"s_mov_b64 exec, {mZ}"); a("s_cbranch_execz L_nozt"); zloads(); a.label("L_nozt")
    a("s_mov_b64 exec, -1")
    a(f"v_lshlrev_b32 {vX[0]}, 16, {vX[0]}")
    def yloads():
        if yatom: a(f"global_atomic_add_x2 v[{p}:{p+1}], {aYL}, v[{ZQ}:{ZQ+1}], {WS} sc0 sc1")
        else: a(f"global_load_dwordx2 v[{p}:{p+1}], {aYL}, {WS} sc1")
    def guprep():
        if YE: a("s_waitcnt vmcnt(1)")
        if rowwise: a("s_barrier")
        stamp(5)
        for q in range(8):
            for hh in range(2):
                a(f"ds_read_b64_tr_b16 v[{BW+4*q+2*hh}:{BW+4*q+2*hh+1}], {aGU} offset:{(8 if rowwise else 4)*hh*PS + (q>>1)*32 + (q&1)*512}")
    if yatom and ytouch and not (YE or tfirst): yloads()
    a(f"s_waitcnt vmcnt({YE})")
    YS0 = 224
    def yld(i): a(f"global_atomic_add_x2 v[{YS0+2*i}:{YS0+2*i+1}], {aYL}, v[{ZQ}:{ZQ+1}], {WS} sc0 sc1")
    c1 = "row_ror:8" if ycoal else "quad_perm:[1,0,3,2]"
    def ytake(src):
        a(f"v_add_f32_dpp v{p+2}, v{src}, v{src} {c1} {FULL}")
        if ycoal: a(f"v_add_f32_dpp v{p+3}, v{src}, v{src} {c1} {FULL}")
    if MPY:
        miss = "s[56:57]"
        a(f"s_mov_b64 {miss}, -1")
        if yflag:
            a(f"s_lshl_b32 s3, {sJ}, 2"); a("v_mov_b32 v53, s3")
            def floads3(): a(f"global_load_dword v54, v53, {bSP} offset:768 sc1")
            poll_loop("g", floads3, ["v54"], "v52", between=guprep)
        for i in range(MPY):
            yld(i)
            if i == 0 and not yflag: guprep()
            elif i < MPY - 1: a(f"s_sleep {SGY}")
        a.label("L_y_loop")
        for i in range(MPY):
            a(f"s_waitcnt vmcnt({MPY-1})")
            a(f"v_cmp_eq_u32 vcc, {sT}, v{YS0+2*i+1}")
            a(f"s_andn2_b64 {miss}, {miss}, vcc")
            a(f"v_cndmask_b32 v{p}, v{p}, v{YS0+2*i}, vcc")
            a("s_cbranch_scc0 L_y_got")
            a(f"s_mov_b64 exec, {miss}"); yld(i); a("s_mov_b64 exec, -1")
        a("s_sub_u32 s48, s48, 1"); a("s_cbranch_scc0 L_y_loop")
        a("s_mov_b32 s48, 0")
        a.label("L_y_got")
        a.vm = []
        ytake(p)
    elif NPY > 1:
        pipe_poll("y", NPY, SGY, 1, yld, lambda i: [f"v{YS0+2*i+1}"], lambda i: ytake(YS0 + 2 * i), between=guprep)
    else:
        if yflag:
            a(f"s_lshl_b32 s3, {sJ}, 2"); a("v_mov_b32 v53, s3")
            def floads2(): a(f"global_load_dword v54, v53, {bSP} offset:768 sc1")
            poll_loop("g", floads2, ["v54"], "v52", between=guprep)
            poll_loop("y", yloads, [f"v{p+1}"], "v52")
        else:
            poll_loop("y", yloads, [f"v{p+1}"], "v52", between=guprep)
        ytake(p)
    stamp(7)
    a(f"s_cmp_eq_u32 {sMode}, 1")
    if ycoal:
        a(f"v_permlane16_swap_b32 v{p+2}, v{p+3}")
        a(f"v_add_f32 v{p}, v{p+2}, v{p+3}"); a(f"v_add_f32 v{p+1}, v{p+2}, v{p+3}")
        a(f"v_permlane32_swap_b32 v{p}, v{p+1}")
        a(f"v_add_f32 v{p}, v{p}, v{p+1}")
    else:
        a(f"v_add_f32_dpp v{p}, v{p+2}, v{p+2} quad_perm:[2,3,0,1] {FULL}")
        a(f"v_add_f32_dpp v{p}, v{p}, v{p} row_half_mirror {FULL}")
    bfround("v52", f"v{p}")
    a(f"v_add_f32 v52, v52, {vX[0]}")
    a("v_cvt_pk_bf16_f32 v52, v52, v52")
    a(f"ds_write_b16 {aHW}, v52 offset:{L_H}")
    a("s_waitcnt lgkmcnt(0)"); a("s_barrier")
    if ldsA:
        a(f"ds_read_b128 v[28:31], {mH} offset:{L_H}")
        a(f"s_mov_b64 exec, {mW3}")
        a(f"ds_read_b128 v[{BW+16}:{BW+19}], {vX[1]} offset:{L_H}")
        a("s_mov_b64 exec, -1")
        a("s_waitcnt lgkmcnt(0)")
    else:
        a(f"ds_read_b128 v[32:35], {vX[1]} offset:{L_H}")
        a("s_waitcnt lgkmcnt(0)")
        for r in range(4): a(f"v_and_or_b32 v{28+r}, v{32+r}, {mH}, {mO}")
    for n, q in enumerate([0, 1, 2, 3, 4, 5, 6, 7]):
        a(f"v_mfma_f32_16x16x32_bf16 v[{GD+4*q}:{GD+4*q+3}], v[28:31], v[{BW+4*q}:{BW+4*q+3}], 0")
        if n < 2 and not ldsA:
            for r in (2 * n, 2 * n + 1): a(f"v_cndmask_b32 v{BW+16+r}, v{BW+16+r}, v{32+r}, {mW3}")
    a("s_mov_b64 exec, 0xffff")
    for g in range(4):
        a(f"v_cvt_pk_bf16_f32 v48, v{GD+8*g}, v{GD+8*g+1}"); a(f"v_cvt_pk_bf16_f32 v50, v{GD+8*g+4}, v{GD+8*g+5}")
        if g == 0: a("s_mov_b32 exec_lo, 0xffff0000")
        if g == 1: a("s_mov_b32 exec_lo, 0"); a("s_mov_b32 exec_hi, 0xffff")
        if g == 2:
            a(f"v_cndmask_b32 v48, v48, v{GD+16}, {mST}"); a(f"v_cndmask_b32 v50, v50, v{GD+17}, {mST}")
            a("s_mov_b32 exec_hi, 0xffff0000")
    a("s_mov_b64 exec, -1")
    a("s_cbranch_scc0 L_pslow")
    a(f"global_store_dwordx4 {aPW}, v[48:51], {WS}")
    a.label("L_psback")
    stamp(8)
    a(f"s_cmp_lg_u64 {mZ}, 0"); a("s_cbranch_scc1 L_final")
    a(f"s_cmp_lg_u32 {sW}, 1"); a("s_cbranch_scc1 " + ("L_gen" if gearly else "L_fin"))
    a(f"s_cmp_ge_u32 {sJ}, 14"); a("s_cbranch_scc1 L_fin")
    a.c("B: activation")
    def ploads():
        a(f"global_load_dwordx4 v[{p+16}:{p+19}], {aI16}, {bSP} sc1")
        for n in range(4): a(f"global_load_dwordx4 v[{p+4*n}:{p+4*n+3}], {vOff}, {bPL} offset:{n*1024} sc1")
    poll_loop("p", ploads, [f"v{p+1+2*i}" for i in (8, 9, 0, 1, 2, 3, 4, 5, 6, 7)], "v52", order=True)
    stamp(9)
    s2_, s1_ = f"v{p+16}", f"v{p+18}"
    for ctl in WS_CTL[:4]:
        a(f"v_add_f32_dpp {s1_}, {s1_}, {s1_} {ctl}"); a(f"v_add_f32_dpp {s2_}, {s2_}, {s2_} {ctl}")
    a(f"v_mul_f32 {s1_}, 0x3b000000, {s1_}")
    a(f"v_mul_f32 {s2_}, 0x3b000000, {s2_}")
    a(f"v_cvt_pk_bf16_f32 v54, 1.0, -{s1_}")
    a(f"v_fma_f32 {s2_}, -{s1_}, {s1_}, {s2_}")
    for n in range(4):
        a(f"v_dot2_f32_bf16 v52, v{p+4*n}, v54, {'0' if n == 0 else 'v52'}")
        a(f"v_dot2_f32_bf16 v53, v{p+4*n+2}, v54, {'0' if n == 0 else 'v53'}")
    a(f"v_max_f32 {s2_}, 0, {s2_}")
    a(f"v_add_f32 {s2_}, 0x3727c5ac, {s2_}")
    a(f"v_rsq_f32 {s2_}, {s2_}")
    a("v_permlane16_swap_b32 v52, v53")
    a("v_add_f32 v52, v52, v53")
    a("v_mov_b32 v53, v52")
    a(f"s_cmp_eq_u32 {sMode}, 1")
    a("v_permlane32_swap_b32 v52, v53")
    a("v_add_f32 v52, v52, v53")
    a(f"v_mul_f32 v52, v52, {s2_}")
    bfround("v52", "v52")
    a("v_mul_f32 v54, 0xbfb8aa3b, v52")
    a("v_mov_b32 v53, v52")
    a("v_exp_f32 v54, v54")
    a("v_permlane16_swap_b32 v52, v53")
    a("v_add_f32 v54, 1.0, v54"); a("v_rcp_f32 v54, v54")
    a("v_mul_f32 v52, v52, v54")
    bfround("v52", "v52")
    a("v_mul_f32 v52, v52, v53")
    a(f"v_mov_b32_dpp v53, v52 quad_perm:[1,1,3,3] {FULL}")
    a("v_cvt_pk_bf16_f32 v50, v52, v53")
    a("s_mov_b64 exec, 0x5555")
    a("s_cbranch_scc0 L_aslow")
    a(f"global_store_dwordx2 {aAW}, v[50:51], {bSP} offset:1024")
    stamp(11)
    a("s_branch L_fin")
    a.label("L_aslow")
    a(f"global_store_dwordx2 {aAW}, v[50:51], {bSP} offset:1024 sc1")
    a("s_branch L_fin")
    a.label("L_final")
    def zbetween():
        a(f"s_and_b32 s3, {sW}, 1"); a("s_lshl_b32 s3, s3, 5"); a(f"v_add_u32 v19, s3, {aOUT}")
        a("s_waitcnt lgkmcnt(0)")
        a(f"ds_read_u16 v18, v19 offset:{L_H}")
        a("s_waitcnt lgkmcnt(0)"); a("v_lshlrev_b32 v18, 16, v18")
    if zwait:
        def floads(): a(f"global_load_dwordx4 v[{p}:{p+3}], v20, {bSP} offset:1024 sc1")
        a(f"v_min_u32 v20, {55*16}, {vOff}")
        poll_loop("f", floads, [f"v{p+1}", f"v{p+3}"], "v52", between=zbetween)
    if ZD0: a(f"s_sleep {ZD0}")
    if NPZ > 1:
        ZS0 = 96
        def zld(i):
            for n in range(2): a(f"global_atomic_add_x2 v[{ZS0+4*i+2*n}:{ZS0+4*i+2*n+1}], {aZL}, v[{ZQ}:{ZQ+1}], {bZ} offset:{512*n} sc0 sc1")
        pipe_poll("z", NPZ, SGZ, 2, zld, lambda i: [f"v{ZS0+4*i+1}", f"v{ZS0+4*i+3}"],
                  lambda i: a(f"v_add_f32 v52, v{ZS0+4*i}, v{ZS0+4*i+2}"), between=lambda: a(f"s_sleep {SGZ}"))
    else:
        poll_loop("z", zloads, [f"v{ZB+1}", f"v{ZB+3}"], "v52")
        a(f"v_add_f32 v52, v{ZB}, v{ZB+2}")
    stamp(14)
    a("v_mov_b32 v53, v52")
    a("v_permlane16_swap_b32 v52, v53")
    a("v_add_f32 v52, v52, v53")
    a("v_mov_b32 v53, v52")
    a("v_permlane32_swap_b32 v52, v53")
    a("v_add_f32 v52, v52, v53")
    bfround("v52", "v52")
    a("v_add_f32 v52, v52, v18")
    if opack:
        a(f"v_mov_b32_dpp v53, v52 quad_perm:[1,1,3,3] {FULL}")
        a("v_cvt_pk_bf16_f32 v52, v52, v53")
        a("s_mov_b64 exec, 0x5555")
        a(f"global_store_dword {aOUT}, v52, s[22:23] {ofl}")
    else:
        a("v_cvt_pk_bf16_f32 v52, v52, v52")
        a("s_mov_b64 exec, 0xffff")
        a(f"global_store_short {aOUT}, v52, s[22:23] {ofl}")
    if gearly:
        a("s_branch L_fin" if stamps else "s_endpgm")
        a.label("L_gen")
        a(f"s_xor_b32 s3, s2, 255"); a(f"s_or_b32 s3, s3, {sW}"); a("s_cbranch_scc1 L_fin")
    else:
        a(f"s_xor_b32 s3, {sW}, 2"); a(f"s_or_b32 s3, s3, {sJ}"); a("s_cbranch_scc1 L_fin")
    a("s_mov_b64 exec, 1")
    a(f"v_mov_b32 v52, {sG}")
    a(f"global_store_dword {vZ}, v52, {WS} offset:{G_OFF} sc1")
    if diag_fix:
        a.label("L_diag")
        a("s_memrealtime s[66:67]"); a("s_waitcnt lgkmcnt(0)")
        a("s_sub_u32 s66, s66, s64"); a(f"s_cmp_lt_u32 s66, {diag_fix}"); a("s_cbranch_scc1 L_diag")
    a.label("L_fin")
    if stamps:
        stamp(10)
        if trace:
            a("s_mov_b64 exec, -1")
            a(f"s_mul_i32 s3, s2, 5"); a(f"s_add_u32 s3, s3, {sW}"); a("s_lshl_b32 s3, s3, 8"); a(f"s_add_u32 s3, s3, {0x200000}")
            a(f"v_lshl_add_u32 v36, {vLane}, 2, s3"); a(f"global_store_dword v36, v247, {WS}")
        a("s_mov_b64 exec, 1")
        a("s_getreg_b32 s94, hwreg(HW_REG_XCC_ID)")
        a("s_waitcnt lgkmcnt(0)")
        a(f"s_mul_i32 s3, s2, 5"); a(f"s_add_u32 s3, s3, {sW}"); a("s_lshl_b32 s3, s3, 7"); a(f"s_add_u32 s3, s3, {STAMP}"); a("v_mov_b32 v36, s3")
        for i in range(8):
            for r in range(4): a(f"v_mov_b32 v{40+r}, s{64+4*i+r}")
            a(f"global_store_dwordx4 v36, v[40:43], {WS} offset:{16*i}")
    a.label("L_done")
    a("s_endpgm")
    a.label("L_oslow")
    a(f"global_store_dwordx2 {aOP}, v[50:51], {WS} sc1")
    a("s_branch L_osback")
    a.label("L_pslow")
    a(f"global_store_dwordx4 {aPW}, v[48:51], {WS} sc1")
    a("s_branch L_psback")
    a.label("L_prep")
    if nobar:
        a.label("L_mx")
        a(f"ds_read_b128 v[28:31], {vZ} offset:{L_MX}"); a(f"ds_read_b32 v32, {vZ} offset:{L_MX+16}")
        a(f"v_mov_b32 v33, {SENT}")
        a("s_waitcnt lgkmcnt(0)")
        a("v_cmp_eq_u32 vcc, v28, v33"); a("v_cmp_eq_u32 s[0:1], v29, v33"); a("s_or_b64 vcc, vcc, s[0:1]")
        a("v_cmp_eq_u32 s[0:1], v30, v33"); a("s_or_b64 vcc, vcc, s[0:1]")
        a("v_cmp_eq_u32 s[0:1], v31, v33"); a("s_or_b64 vcc, vcc, s[0:1]")
        a("v_cmp_eq_u32 s[0:1], v32, v33"); a("s_or_b64 vcc, vcc, s[0:1]")
        a("s_cbranch_scc0 L_mx2")
        a("s_sub_u32 s48, s48, 1"); a("s_cbranch_scc0 L_mx")
        a("s_mov_b32 s48, 0")
        a.label("L_mx2")
        a(f"s_cmp_ge_u32 {sK}, 16"); a("s_cbranch_scc1 L_mx3")
    else: a("s_barrier")
    for i in range(16):
        cb, n, c0 = i >> 3, (i >> 1) & 3, i & 1
        if zrd:
            a(f"ds_read_b64_tr_b16 v[{BW+4*i}:{BW+4*i+1}], {aWO} offset:{n*2048 + c0*256 + cb*32}")
            a(f"ds_read_b64_tr_b16 v[{BW+4*i+2}:{BW+4*i+3}], {aWO} offset:{n*2048 + c0*256 + cb*32 + 128}")
        else:
            a(f"ds_read_b64_tr_b16 v[{BW+4*i}:{BW+4*i+1}], {aWO} offset:{n*2048 + c0*256 + cb*32}")
            a(f"v_mov_b32 v{BW+4*i+3}, 0")
    if not zrd:
        a("s_waitcnt lgkmcnt(0)")
        for i in range(16):
            a(f"v_mov_b32 v{BW+4*i+2}, v{BW+4*i+1}"); a(f"v_mov_b32 v{BW+4*i+1}, 0")
    if nobar:
        a.label("L_mx3")
        a("v_max_f32 v28, v28, v29"); a("v_max3_f32 v28, v28, v30, v31")
        a(f"v_sub_f32 v29, {vM}, v28"); a(f"v_mul_f32 v29, {LOG2E}, v29"); a("v_exp_f32 v29, v29")
        a(f"v_mov_b32 {vM}, v28")
        for r in [vL] + ACCr: a(f"v_mul_f32 {r}, {r}, v29")
    a("s_branch L_vloop2")
    for f in oolb: f()
    a.label("L_svc")
    a.c("service wave: LN1, q projection (1/8 of the rows), q exchange, weight staging")
    a.vm = []
    a(f"v_lshrrev_b32 v41, 4, {vLane}"); a(f"v_and_b32 v42, 15, {vLane}")
    a("v_lshl_add_u32 v43, v42, 2, v41")
    a(f"s_lshl_b32 s3, {sS}, 6"); a("v_add_lshl_u32 v43, v43, s3, 1")
    a("v_lshlrev_b32 v58, 13, v41"); a("v_lshl_add_u32 v58, v42, 4, v58")
    a(f"s_mov_b32 s46, {4<<20}"); a("s_mov_b32 s47, 0x20000")
    a(f"s_lshl_b32 s3, {sS}, 19"); a(f"s_lshl_b32 s14, {sH}, 8"); a("s_add_u32 s3, s3, s14")
    a("s_waitcnt lgkmcnt(0)")
    a(f"s_load_dword {sG}, {WS}, {G_OFF}")
    a(f"global_load_dwordx4 v[36:39], {vOff}, s[4:5]", tag="x")
    a("global_load_ushort v40, v43, s[4:5]", tag="x")
    a("s_mov_b32 s44, s10"); a("s_mov_b32 s45, s11")
    for t in range(16):
        a(f"buffer_load_dwordx4 v[{64+4*t}:{67+4*t}], v58, s[44:47], s3 offen {wnt}", tag=f"wq{t}")
        if t < 15: a("s_add_u32 s3, s3, 0x8000")
    ids()
    if vt:
        a(f"s_lshl_b32 s3, {sH}, 22"); a(f"s_lshl_b32 s14, {sS}, 15"); a("s_add_u32 s3, s3, s14"); a(f"v_lshl_add_u32 v56, {vLane}, 21, s3")
        a("s_mov_b64 exec, 3")
        a("global_load_dword v128, v56, s[8:9] nt", tag="t")
        if vt >= 2: a("global_load_dword v129, v56, s[6:7] nt", tag="t")
        if vt >= 3:
            a("s_mov_b64 exec, 1")
            a(f"s_mul_i32 s3, {sJ}, {32*3584}"); a("v_mov_b32 v56, s3")
            a("global_load_dword v130, v56, s[16:17] nt", tag="t"); a("global_load_dword v131, v56, s[18:19] nt", tag="t")
            a(f"s_mul_i32 s3, {sXg}, {224*1024}"); a("v_mov_b32 v56, s3"); a("global_load_dword v132, v56, s[20:21] nt", tag="t")
            a(f"s_lshl_b32 s3, {sXg}, 19"); a("v_mov_b32 v56, s3"); a("global_load_dword v133, v56, s[12:13] nt", tag="t")
        a("s_mov_b64 exec, -1")
    make_masks("v56", "v57")
    a(f"s_lshl_b32 s3, {sH}, 3"); a(f"s_add_u32 s3, s3, {sS}"); a("s_lshl_b32 s3, s3, 10"); a(f"s_add_u32 s3, s3, {QP}")
    a("v_lshlrev_b32 v58, 6, v42"); a("v_lshl_add_u32 v58, v41, 5, v58"); a("v_add_u32 v58, s3, v58")
    a(f"s_lshl_b32 s3, {sH}, 13"); a(f"s_add_u32 s3, s3, {QP + 4096}"); a(f"v_add_u32 v59, s3, {vOff}")
    a("s_getreg_b32 s40, hwreg(HW_REG_XCC_ID, 0, 4)")
    a(f"s_lshl_b32 s3, {sXg}, 12"); a(f"s_add_u32 s3, s3, {XP}")
    a(f"v_and_b32 v61, 31, {vLane}"); a("v_lshl_add_u32 v61, v61, 7, s3")
    a(f"s_lshl_b32 s14, {sK}, 7"); a("s_add_u32 s3, s3, s14"); a("v_mov_b32 v60, s3")
    a("s_waitcnt lgkmcnt(0)")
    mktag()
    a("v_mov_b32 v62, s40"); a(f"v_mov_b32 v63, {sT}")
    a("s_mov_b64 exec, 1")
    a(f"global_store_dwordx2 v60, v[62:63], {WS} sc1", tag="xs")
    a("s_mov_b64 exec, -1")
    a.wait("x")
    stamp(4)
    X = [f"v{36+i}" for i in range(4)]; F = [f"v{44+i}" for i in range(9)]
    sMean, sDen, sRden = "s14", "s15", "s3"
    for i in range(4):
        a(f"v_lshlrev_b32 {F[2*i]}, 16, {X[i]}"); a(f"v_and_b32 {F[2*i+1]}, 0xffff0000, {X[i]}")
    t = F[8]
    a(f"v_add_f32 {t}, {F[0]}, {F[1]}")
    for i in range(2, 8): a(f"v_add_f32 {t}, {t}, {F[i]}")
    wavesum63([t])
    a(f"v_mul_f32 {t}, 0x3b000000, {t}")
    a(f"v_readlane_b32 {sMean}, {t}, 63")
    for i in range(8): a(f"v_subrev_f32 {F[i]}, {sMean}, {F[i]}")
    bfround(t, t)
    a(f"v_mul_f32 {F[0]}, {F[0]}, {F[0]}")
    a(f"v_readlane_b32 {sMean}, {t}, 63")
    for i in range(1, 8): a(f"v_fmac_f32 {F[0]}, {F[i]}, {F[i]}")
    t = F[0]
    wavesum63([t])
    a(f"v_mul_f32 {t}, 0x3b000000, {t}")
    bfround(t, t)
    a(f"v_add_f32 {t}, 0x3727c5ac, {t}")
    bfround(t, t)
    a(f"v_sqrt_f32 {t}, {t}")
    bfround(t, t)
    a(f"v_rcp_f32 {F[1]}, {t}")
    a(f"v_readlane_b32 {sDen}, {t}, 63")
    a(f"v_readlane_b32 {sRden}, {F[1]}, 63")
    a("v_lshlrev_b32 v40, 16, v40")
    a(f"v_subrev_f32 v40, {sMean}, v40")
    bfround("v40", "v40")
    a(f"v_mul_f32 v44, {sRden}, v40")
    a(f"v_fma_f32 v45, -v44, {sDen}, v40")
    a(f"v_fmac_f32 v44, {sRden}, v45")
    a("v_cvt_pk_bf16_f32 v40, v44, v44")
    a(f"global_load_dwordx2 v[36:37], v61, {WS} sc1", tag="xl")
    for r in (49, 51, 53, 55): a(f"v_mov_b32 v{r}, {sT}")
    for t in range(16):
        A = 28 + 4 * (t % 2)
        for r in range(4): a(f"v_and_b32_dpp v{A+r}, v40, {MK[r]} row_newbcast:{t} {FULL}")
        a.wait(f"wq{t}")
        a(f"v_mfma_f32_16x16x32_bf16 v[44:47], v[{A}:{A+3}], v[{64+4*t}:{67+4*t}], {'0' if t == 0 else 'v[44:47]'}")
    a("v_mov_b32 v48, v44"); a("v_mov_b32 v50, v45"); a("v_mov_b32 v52, v46"); a("v_mov_b32 v54, v47")
    stamp(5)
    a.label("L_x_chk")
    a.waitall()
    a(f"v_cmp_ne_u32 vcc, {sT}, v37")
    a("s_cbranch_vccz L_x_got")
    a(f"global_load_dwordx2 v[36:37], v61, {WS} sc1")
    a("s_sub_u32 s48, s48, 1"); a("s_cbranch_scc0 L_x_chk")
    a("s_mov_b32 s48, 0")
    a.waitall()
    a.label("L_x_got")
    a("v_cmp_ne_u32 vcc, s40, v36")
    a("s_cmp_eq_u64 vcc, 0"); a(f"s_cselect_b32 {sMode}, {0 if forceslow else 1}, 0")
    a(f"s_cmp_eq_u32 {sMode}, 1")
    a("s_mov_b32 exec_hi, 0")
    a("s_cbranch_scc0 L_qslow")
    a(f"global_store_dwordx4 v58, v[48:51], {WS}"); a(f"global_store_dwordx4 v58, v[52:55], {WS} offset:16")
    a("s_branch L_qst")
    a.label("L_qslow")
    a(f"global_store_dwordx4 v58, v[48:51], {WS} sc1"); a(f"global_store_dwordx4 v58, v[52:55], {WS} offset:16 sc1")
    a.label("L_qst")
    a("s_mov_b64 exec, -1")
    stamp(1)
    def qloads():
        for pp in range(8): a(f"global_load_dwordx4 v[{64+4*pp}:{67+4*pp}], v59, {WS} offset:{pp*1024-4096} sc1")
    poll_loop("q", qloads, [f"v{65+2*i}" for i in range(16)], "v44")
    for pp in range(1, 8):
        a(f"v_add_f32 v64, v64, v{64+4*pp}"); a(f"v_add_f32 v66, v66, v{66+4*pp}")
    a("v_cvt_pk_bf16_f32 v44, v64, v66")
    a(f"v_lshlrev_b32 v43, 2, {vLane}")
    a(f"ds_write_b32 v43, v44 offset:{L_Q}")
    a(f"v_mov_b32 v36, {sMode}"); a("v_mov_b32 v37, 0")
    a(f"ds_write_b64 v37, v[36:37] offset:{L_MODE}")
    if nobar:
        a(f"v_mov_b32 v38, {SENT}"); a(f"s_cmp_lt_u32 {sK}, 16"); a("s_cselect_b64 exec, 31, 15")
        a(f"ds_write_b32 v37, v37 offset:{L_MX+16}")
        a(f"ds_write_b32 v43, v38 offset:{L_MX}")
        a("s_mov_b64 exec, -1")
    def warmup():
        if warm == 1:
            a(f"s_lshl_b32 s3, {sXg}, 5"); a(f"s_add_u32 s3, s3, {sK}"); a("s_lshl_b32 s3, s3, 14"); a(f"v_add_u32 v52, s3, {vOff}")
        else:
            a(f"s_lshl_b32 s3, {sXg}, 9"); a(f"s_add_u32 s3, s3, {sK}"); a("s_lshl_b32 s3, s3, 10"); a(f"v_add_u32 v53, s3, {vOff}")
            a(f"s_lshl_b32 s14, {sXg}, 16")
        a("s_mov_b32 s15, 16")
        a.label("L_warm")
        if warm == 2: a("s_and_b32 s3, s14, 0x78000"); a("v_add_u32 v52, s3, v53"); a("s_add_u32 s14, s14, 0x8000")
        a(f"s_waitcnt vmcnt({WDW-1})")
        a(f"global_load_dwordx4 v[64:67], v52, s[12:13] {wmnt}")
        if warm == 1: a("v_add_u32 v52, 0x400, v52")
        a("s_sub_u32 s15, s15, 1"); a("s_cmp_lg_u32 s15, 0"); a("s_cbranch_scc1 L_warm")
        stamp(6)
    stamp(2)
    if warm and wpre: warmup()
    a("s_waitcnt lgkmcnt(0)")
    a("s_barrier")
    if warm and not wpre: warmup()
    if vlate:
        a(f"s_lshl_b32 s15, {sJ}, 1"); a(f"s_add_u32 s15, s15, {vlate}")
        a.label("L_vl"); a("s_sleep 8"); a("s_sub_u32 s15, s15, 1"); a("s_cbranch_scc0 L_vl")
        a(f"s_lshl_b32 s3, {sH}, 22"); a(f"s_lshl_b32 s14, {sS}, 15"); a("s_add_u32 s3, s3, s14"); a(f"v_lshl_add_u32 v56, {vLane}, 21, s3")
        a("s_mov_b64 exec, 3"); a("global_load_dword v128, v56, s[8:9] nt"); a("s_mov_b64 exec, -1")
    a(f"s_cmp_lt_u32 {sK}, 16"); a("s_cbranch_scc1 L_svcA")
    a(f"s_mul_i32 s3, {sXg}, 14"); a(f"s_add_u32 s3, s3, {sJ}"); a(f"s_mul_i32 s3, s3, {PRS}"); a(f"s_add_u32 s3, s3, {PP}")
    a(f"s_lshl_b32 s14, {sXg}, 11"); a(f"s_add_u32 s14, s14, {SP}")
    a(f"s_cmp_lt_u32 {sJ}, 14"); a("s_cselect_b32 s3, s3, s14"); a("s_cselect_b32 s6, -1, 0xffff")
    a(f"v_lshl_add_u32 v52, {vLane}, 7, s3")
    a(f"s_lshl_b32 s3, {sJ}, 11"); a(f"s_add_u32 s3, s3, {YP - 32*128}")
    a("s_mov_b32 exec_lo, 0"); a(f"v_lshl_add_u32 v52, {vLane}, 7, s3")
    a("s_mov_b32 exec_lo, s6"); a(f"s_mov_b32 exec_hi, {0xffff if (ytouch and not yatom) else 0}")
    a(f"global_load_dword v64, v52, {WS} sc1")
    a(f"s_mul_i32 s3, {sH}, {OHS}"); a(f"s_add_u32 s3, s3, {OP}")
    a("s_mov_b64 exec, -1"); a(f"v_lshl_add_u32 v52, {vLane}, 7, s3")
    a(f"s_cmp_lg_u32 {sS}, 4"); a("s_cbranch_scc1 L_svcB2")
    a("s_mov_b32 exec_hi, 1")
    a(f"global_load_dword v65, v52, {WS} sc1")
    a.label("L_svcB2")
    if cwarm:
        a(f"s_cmp_lg_u32 {sJ}, 15"); a("s_cbranch_scc1 L_svcB3")
        a("s_mov_b64 exec, -1")
        a("s_getpc_b64 s[8:9]")
        a.raw("L_pc:")
        a("s_sub_u32 s8, s8, L_pc-L_kloop"); a("s_subb_u32 s9, s9, 0")
        a(f"v_lshlrev_b32 v52, 7, {vLane}")
        a("global_load_dword v67, v52, s[8:9]")
        a.label("L_svcB3")
    a(f"s_and_b32 s3, {sJ}, 7"); a(f"s_cmp_lg_u32 s3, {sXg}"); a(f"s_cbranch_scc1 {'L_fin' if stamps else 'L_done'}")
    a("s_mov_b64 exec, 1")
    if otouch == 2: a(f"s_lshl_b32 s3, {sJ}, 6"); a("v_mov_b32 v37, s3")
    if otouch: a("global_load_dword v66, v37, s[22:23]")
    a("s_branch L_fin" if stamps else "s_endpgm")
    a.label("L_svcA")
    a(f"v_lshrrev_b32 v52, 2, {vLane}"); a("v_lshlrev_b32 v52, 10, v52"); a(f"v_and_b32 v53, 3, {vLane}"); a("v_lshl_add_u32 v52, v53, 4, v52")
    a(f"s_lshl_b32 s3, {sXg}, 19"); a(f"s_lshl_b32 s14, {sJ}, 6"); a("s_add_u32 s3, s3, s14"); a("v_add_u32 v52, s3, v52")
    a(f"s_mov_b32 m0, {L_W}")
    if nobar:
        a.label("L_swait")
        a("s_sleep 8")
        a(f"ds_read_b32 v39, v37 offset:{L_MX}"); a("s_waitcnt lgkmcnt(0)")
        a("v_cmp_ne_u32 vcc, v38, v39"); a("s_cbranch_vccnz L_swo")
        a("s_sub_u32 s48, s48, 1"); a("s_cbranch_scc0 L_swait")
    elif warm: a("s_barrier")
    a.label("L_swo")
    a(f"s_waitcnt vmcnt({(WD2 if warm else WD)-1})")
    a(f"global_load_lds_dwordx4 v52, s[12:13] {ont}")
    a("v_add_u32 v52, 0x4000, v52"); a("s_add_u32 m0, m0, 1024")
    a(f"s_cmp_lt_u32 m0, {L_W + 32768}"); a("s_cbranch_scc1 L_swo")
    a("s_waitcnt vmcnt(0)")
    stamp(3)
    if nobar: a(f"ds_write_b32 v37, v37 offset:{L_MX+16}"); a("s_waitcnt lgkmcnt(0)")
    else: a("s_barrier")
    a("s_branch L_fin" if stamps else "s_endpgm")
    a.raw("L_codeend:")
    a.raw('.section .rodata,"a"'); a.raw(".p2align 6"); a.raw(f".amdhsa_kernel {NAME}")
    a.raw("  .amdhsa_next_free_vgpr 256"); a.raw("  .amdhsa_next_free_sgpr 102"); a.raw("  .amdhsa_accum_offset 256")
    a.raw("  .amdhsa_group_segment_fixed_size 0"); a.raw("  .amdhsa_kernarg_size 96"); a.raw("  .amdhsa_user_sgpr_count 2")
    a.raw("  .amdhsa_user_sgpr_kernarg_segment_ptr 1"); a.raw("  .amdhsa_system_sgpr_workgroup_id_x 1")
    a.raw("  .amdhsa_float_denorm_mode_32 3")
    a.raw(".end_amdhsa_kernel")
    open(fn, "w").write(a.text())
    print(fn, "instrs", a.nins, "nops", a.nnop)

if __name__ == "__main__":
    gen("final.s")
```
